```python
import torch

def _softmax(x, axis=-1):
    return torch.softmax(x, dim=axis)

def _gelu(x):
    return torch.nn.functional.gelu(x, approximate='tanh')

def _silu(x):
    return torch.nn.functional.silu(x)

def _sigmoid(x):
    return torch.sigmoid(x)

def _layernorm(x, axis=-1, eps=1e-05):
    m = x.mean(dim=axis, keepdim=True)
    v = x.var(dim=axis, keepdim=True, unbiased=False)
    return (x - m) / torch.sqrt(v + eps)

def _scatter_add(tgt, idx, src, axis=0):
    return tgt.clone().index_add_(axis, idx, src)

def _segment_sum(src, seg, n):
    out = torch.zeros((n,) + src.shape[1:], dtype=src.dtype)
    return out.index_add_(0, seg, src)

def _pad(x, pw):
    flat = tuple((v for pair in reversed(pw) for v in pair))
    return torch.nn.functional.pad(x, flat)
kernel_name = 'adaLN_cond__sliding_block__moe_arch_mod__prompt'

def setup_inputs():

    _w = lambda a: (lambda t: t.to(torch.bfloat16) if t.is_floating_point() else t)(torch.as_tensor(a))

    def _A_setup():
        B, S, D = (1, 2048, 512)
        return {'x': _w((lambda *s: torch.randn(*s, dtype=torch.bfloat16) * 0.05)(B, S, D)), 'wqkv': _w((lambda *s: torch.randn(*s, dtype=torch.bfloat16) * 0.05)(D, 3 * D)), 'wo': _w((lambda *s: torch.randn(*s, dtype=torch.bfloat16) * 0.2)(D, D))}
    _A_in = _A_setup()

    def _B_setup():
        B, S, D, F, C = (1, 2048, 512, 1376, 2)
        return {'x': _w((lambda *s: torch.randn(*s, dtype=torch.bfloat16) * 0.05)(B, S, D)), 'w_r': _w((lambda *s: torch.randn(*s, dtype=torch.bfloat16) * 3.2)(D)), 'w_gate': _w((lambda *s: torch.randn(*s, dtype=torch.bfloat16) * 0.1)(D, F)), 'w_up': _w((lambda *s: torch.randn(*s, dtype=torch.bfloat16) * 0.1)(D, F)), 'w_down': _w((lambda *s: torch.randn(*s, dtype=torch.bfloat16) * 0.1)(F, D))}
    _B_in = _B_setup()
    return {'A_x': _A_in['x'], 'A_wqkv': _A_in['wqkv'], 'A_wo': _A_in['wo'], 'B_x': _B_in['x'], 'B_w_r': _B_in['w_r'], 'B_w_gate': _B_in['w_gate'], 'B_w_up': _B_in['w_up'], 'B_w_down': _B_in['w_down'], 'c': _w((lambda *s: torch.randn(*s, dtype=torch.bfloat16) * 0.1)(1, 512) * 8.0), 'w_mod': _w((lambda *s: torch.randn(*s, dtype=torch.bfloat16) * 0.1)(512, 6 * 512) * 512 ** (-0.5) * 8.0)}

def reference(A_x, A_wqkv, A_wo, B_x, B_w_r, B_w_gate, B_w_up, B_w_down, c, w_mod):

    def _A_ref(x, wqkv, wo):
        B, S, D = x.shape
        H = 32
        Dh = D // H
        W = 256
        qkv = (lambda x, *d: x.permute(*d))((x @ wqkv).reshape(B, S, 3, H, Dh), 2, 0, 3, 1, 4)
        q, k, v = (qkv[0], qkv[1], qkv[2])
        scores = torch.einsum('bhqd,bhkd->bhqk', q, k) * Dh ** (-0.5)
        idx = torch.arange(S)
        mask = (idx[:, None] - idx[None, :] >= 0) & (idx[:, None] - idx[None, :] < W)
        scores = torch.where(mask[None, None], scores, -1000000000.0)
        p = _softmax(scores, axis=-1)
        o = torch.einsum('bhqk,bhkd->bhqd', p, v)
        return (lambda x, *d: x.permute(*d))(o, 0, 2, 1, 3).reshape(B, S, D) @ wo

    def _B_ref(x, w_r, w_gate, w_up, w_down):
        B, S, D = x.shape
        C = 2
        r = x @ w_r
        idx = torch.argsort(-r, axis=-1)[:, :C]
        idx_e = (lambda x, n, axis: torch.repeat_interleave(x, n, dim=axis))(idx.reshape(B, C, 1), D, axis=2)
        x_sel = (lambda x, i, axis: torch.take_along_dim(x, i, dim=axis))(x, idx_e, axis=1)
        g = _silu(x_sel @ w_gate)
        u = x_sel @ w_up
        y = g * u @ w_down
        r_sel = _sigmoid((lambda x, i, axis: torch.take_along_dim(x, i, dim=axis))(r, idx, axis=1))
        y = y * r_sel.reshape(B, C, 1)
        b_off = (torch.arange(B) * S).reshape(B, 1)
        flat_idx = (idx + b_off).reshape(B * C)
        zero = (x * 0.0).reshape(B * S, D)
        upd = _scatter_add(zero, flat_idx, y.reshape(B * C, D), axis=0)
        return x + upd.reshape(B, S, D)
    x = A_x
    mod = (_silu(c) @ w_mod).reshape(c.shape[0], 6, 1, -1)
    sa, ca, ga, sb, cb, gb = (mod[:, 0].clone(), mod[:, 1].clone(), mod[:, 2].clone(), mod[:, 3].clone(), mod[:, 4].clone(), mod[:, 5].clone())
    h = _layernorm(x, axis=-1) * (1 + ca) + sa
    x = x + ga * _A_ref(h, A_wqkv, A_wo)
    h = _layernorm(x, axis=-1) * (1 + cb) + sb
    x = x + gb * _B_ref(h, B_w_r, B_w_gate, B_w_up, B_w_down)
    return x
```

```python
import re

TRANS = ('v_exp_f32','v_log_f32','v_rcp_f32','v_rsq_f32','v_sqrt_f32','v_sin_f32','v_cos_f32')

def regs_of(tok):
    tok = tok.strip()
    out = set()
    m = re.fullmatch(r'-?\|?([vsa])\[(\d+):(\d+)\]\|?', tok)
    if m:
        for n in range(int(m.group(2)), int(m.group(3))+1): out.add((m.group(1), n))
        return out
    m = re.fullmatch(r'-?\|?([vsa])(\d+)\|?', tok)
    if m:
        out.add((m.group(1), int(m.group(2)))); return out
    m = re.fullmatch(r'-?abs\(([vsa])(\d+)\)', tok)
    if m:
        out.add((m.group(1), int(m.group(2)))); return out
    if tok in ('vcc','vcc_lo','vcc_hi'): return {('x','vcc')}
    if tok in ('exec','exec_lo','exec_hi'): return {('x','exec')}
    if tok == 'm0': return {('x','m0')}
    return out

class Ins:
    def __init__(self, text):
        self.text = text
        t = text.split(';')[0].strip()
        self.label = None
        if t.endswith(':'):
            self.label = t[:-1]; self.op = None; return
        if t.startswith('.') or not t:
            self.op = None; return
        parts = t.split(None, 1)
        self.op = op = parts[0]
        rest = parts[1] if len(parts) > 1 else ''
        ops = []; depth = 0; cur = ''
        for ch in rest:
            if ch in '[(': depth += 1
            if ch in '])': depth -= 1
            if ch == ',' and depth == 0: ops.append(cur.strip()); cur = ''
            else: cur += ch
        if cur.strip(): ops.append(cur.strip())
        self.mods = ''
        if ops:
            sp = ops[-1].split(None, 1)
            ops[-1] = sp[0]
            if len(sp) > 1: self.mods = sp[1]
        self.ops = ops
        self.w = set(); self.r = set()
        self.kind = 'other'
        R = [regs_of(o) for o in ops]
        if op.startswith('v_mfma'):
            self.kind = 'mfma'; self.w = R[0]; self.r = R[1] | R[2] | R[3]
            self.srcab = R[1] | R[2]; self.srcc = R[3]
            self.passes = 8 if '32x32' in op else 4
        elif op.startswith('v_'):
            self.kind = 'valu'
            self.trans = any(op.startswith(x) for x in TRANS)
            self.dpp = ('_dpp' in op) or ('row_' in self.mods) or ('quad_perm' in self.mods)
            self.perml = op.startswith('v_permlane')
            self.rdlane = op.startswith('v_readfirstlane') or op.startswith('v_readlane')
            if op.startswith('v_cmp'):
                self.w = R[0]; self.r = set().union(*R[1:])
                if op.startswith('v_cmpx'): self.w |= {('x','exec')}
            elif self.perml and 'swap' in op:
                self.w = R[0] | R[1]; self.r = R[0] | R[1]
            elif op.startswith('v_add_co') or op.startswith('v_sub_co') or op.startswith('v_addc_co') or op.startswith('v_subb_co') or op.startswith('v_mad_u64'):
                self.w = R[0] | R[1]; self.r = set().union(*R[2:])
            else:
                self.w = R[0]; self.r = set().union(*R[1:]) if len(R) > 1 else set()
                if op.startswith('v_fmac') or op.startswith('v_dot2c') or op.startswith('v_pk_fmac') or op.startswith('v_writelane') or 'sdwa' in op or self.dpp:
                    self.r |= R[0]
                if op.startswith('v_cndmask') and len(ops) == 3: self.r |= {('x','vcc')}
        elif op.startswith('global_') or op.startswith('buffer_') or op.startswith('flat_'):
            self.kind = 'vmem'
            self.wide_store = False
            if 'lds' in op or ' lds' in (' '+self.mods) or ops[-1] == 'lds':
                self.r = set().union(*R); self.ldsdma = True; self.r |= {('x','m0')}
            elif 'store' in op or 'atomic' in op:
                self.r = set().union(*R)
                if 'x3' in op or 'x4' in op:
                    self.wide_store = True
                    self.sdata = R[1] if op.startswith('global') else R[0]
                if 'atomic' in op and 'sc0' in self.mods: self.w = R[0]
            elif 'load' in op:
                self.w = R[0]; self.r = set().union(*R[1:])
            else:
                pass
        elif op.startswith('ds_'):
            self.kind = 'ds'
            if 'read' in op or 'bpermute' in op or 'swizzle' in op or 'permute' in op:
                self.w = R[0]; self.r = set().union(*R[1:])
            else:
                self.r = set().union(*R)
        elif op.startswith('s_'):
            self.kind = 'salu'
            if op.startswith('s_cmp') or op.startswith('s_cbranch') or op in ('s_branch','s_barrier','s_endpgm','s_waitcnt','s_nop','s_setprio','s_sleep'):
                self.r = set().union(*R) if R else set()
            elif op.startswith('s_load') :
                self.w = R[0]; self.r = set().union(*R[1:])
            else:
                self.w = R[0] if R else set(); self.r = set().union(*R[1:]) if len(R) > 1 else set()
                if 'saveexec' in op: self.w |= {('x','exec')}
    def ws(self):
        if self.op == 's_nop': return int(self.ops[0], 0) + 1
        return 1

def isv(s): return {x for x in s if x[0] in 'va'}
def iss(s): return {x for x in s if x[0] == 's' or x == ('x','vcc')}

def need(prod, cons):
    n = 0
    pk, ck = prod.kind, cons.kind
    if pk == 'valu':
        pw = isv(prod.w)
        if ck == 'mfma' and pw & cons.r: n = max(n, 2)
        if ck == 'valu':
            if (cons.dpp or cons.perml) and pw & cons.r: n = max(n, 2)
            if cons.rdlane and pw & cons.r: n = max(n, 1)
            if prod.trans and not cons.trans and pw & cons.r: n = max(n, 1)
            if prod.trans and cons.trans and pw & cons.r: n = max(n, 1)
            if ('sdwa' in prod.op or 'op_sel' in prod.mods) and pw & (cons.r | cons.w): n = max(n, 1)
            if iss(prod.w) & cons.r:
                n = max(n, 4 if (cons.op.startswith('v_readlane') or cons.op.startswith('v_writelane')) else 2)
            if ('x','exec') in prod.w: n = max(n, 5 if cons.dpp else 4)
        if ck == 'vmem' and iss(prod.w) & cons.r: n = max(n, 5)
        if ck == 'salu' and iss(prod.w) & cons.r: n = max(n, 4)
        if ck == 'mfma' and ('x','exec') in prod.w: n = max(n, 4)
        if prod.trans and ck in ('vmem','ds') and pw & cons.r: n = max(n, 1)
    if pk == 'mfma':
        big = {4: 8, 8: 12}[prod.passes]
        if ck == 'mfma':
            if prod.w & cons.srcab: n = max(n, big)
            if prod.w & cons.srcc:
                if prod.w == cons.srcc and prod.passes == cons.passes: pass
                else: n = max(n, {4: 6, 8: 10}[prod.passes])
            elif prod.w & cons.w and not (prod.w == cons.w):
                n = max(n, big)
            elif prod.w & cons.w and not (prod.w & cons.srcc):
                n = max(n, big)
        elif ck in ('valu','vmem','ds'):
            if prod.w & (cons.r | cons.w): n = max(n, big)
            if ck == 'valu' and prod.srcc & cons.w: n = max(n, {4: 3, 8: 7}[prod.passes])
    if pk == 'vmem' and getattr(prod, 'wide_store', False):
        if ck == 'valu' and prod.sdata & cons.w: n = max(n, 2)
        elif ck in ('vmem','ds','mfma') and prod.sdata & cons.w: n = max(n, 1)
    if pk == 'ds' and prod.op in ('ds_write_b128','ds_write_b96'):
        pass
    if pk == 'salu' and ('x','m0') in prod.w and ck == 'vmem' and getattr(cons,'ldsdma',False): n = max(n, 1)
    return n

class Asm:
    def __init__(self):
        self.lines = []
    def __call__(self, s):
        for l in s.split('\n'):
            l = l.strip()
            if l: self.lines.append(l)
    def label(self, n): self.lines.append(n + ':')
    def raw(self, s): self.lines.append(s)

def fix_hazards(lines, maxd=20):
    ins = [Ins(l) for l in lines]
    changed = True
    it = 0
    while changed:
        it += 1
        changed = False
        labels = {x.label: i for i, x in enumerate(ins) if x.label}
        brs = {}
        for i, x in enumerate(ins):
            if x.op and (x.op.startswith('s_cbranch') or x.op == 's_branch'):
                brs.setdefault(labels.get(x.ops[0]), []).append(i)
        out = []
        for i, x in enumerate(ins):
            if x.op and x.kind in ('valu','mfma','vmem','ds','salu') and x.op not in ('s_nop',):
                req = 0
                stack = [(i-1, 0)]; seen = {}
                while stack:
                    j, d = stack.pop()
                    if j < 0 or d >= maxd: continue
                    if seen.get(j, 99) <= d: continue
                    seen[j] = d
                    y = ins[j]
                    if y.label is not None:
                        for b in brs.get(j, []): stack.append((b, d))
                        stack.append((j-1, d)); continue
                    if y.op is None:
                        stack.append((j-1, d)); continue
                    if y.op in ('s_endpgm',): continue
                    if y.op == 's_branch' and j != i-1 and False: continue
                    nreq = need(y, x)
                    if nreq > d: req = max(req, nreq - d)
                    if y.op == 's_branch':
                        if seen.get('via') : pass
                    stack.append((j-1, d + y.ws()))
                if req > 0:
                    while req > 0:
                        k = min(req, 16)
                        out.append(Ins('s_nop %d' % (k-1))); req -= k
                    changed = True
            out.append(x)
        ins = out
        if it > 5: break
    return [x.text for x in ins]
```

```python
from asmlib import Asm, fix_hazards
NAME='adaLN_cond__sliding_block__moe_arch_mod__prompt'
KA=dict(x=0,wqkv=8,wo=16,wr=32,wg=40,wu=48,wd=56,c=64,wmod=72,out=80,dbg=88,ws=96)
WS_N=0x000000; WS_W=0x200000; WS_Q=0x400000; WS_K=0x600000; WS_V=0x800000
WS_O=0xA00000; WS_X1=0xC00000; WS_WO=0xE00000; WS_MOD=0xE80000; WS_ST=0xE90000
WS_ACT=0xE96000; WS_SEL=0xE98C00; WS_MODP=0xE84000; WS_WD=0x1400000; WDS=11008
NKS=32
LOG2E=1.4426950408889634
import struct
def f2u(f): return struct.unpack('<I',struct.pack('<f',f))[0]
def hx(f): return '0x%08x'%f2u(f)
def vr(b,n=1): return 'v%d'%b if n==1 else 'v[%d:%d]'%(b,b+n-1)
def sr(b,n=1): return 's%d'%b if n==1 else 's[%d:%d]'%(b,b+n-1)
def ldarg(a,sreg,key): a(f's_load_dwordx2 s[{sreg}:{sreg+1}], s[0:1], {KA[key]}')
def addc(a,d,s,imm):
    a(f's_add_u32 s{d}, s{s}, {imm}'); a(f's_addc_u32 s{d+1}, s{s+1}, 0')
def bf16r(a,d,s,tmp=None):
    a(f'v_cvt_pk_bf16_f32 v{d}, v{s}, v{s}'); a(f'v_lshlrev_b32 v{d}, 16, v{d}')
def silu(a,d,x,t,sneg):
    a(f'v_mul_f32 v{t}, s{sneg}, v{x}'); a(f'v_exp_f32 v{t}, v{t}'); a(f'v_add_f32 v{t}, 1.0, v{t}')
    a(f'v_rcp_f32 v{t}, v{t}'); a(f'v_mul_f32 v{d}, v{x}, v{t}')
def unpack(a,lo,hi,src):
    a(f'v_lshlrev_b32 v{lo}, 16, v{src}'); a(f'v_and_b32 v{hi}, 0xffff0000, v{src}')
def halfsum(a,v,t,op='v_add_f32'):
    a(f'v_mov_b32 v{t}, v{v}'); a(f'v_permlane32_swap_b32 v{v}, v{t}'); a(f'{op} v{v}, v{v}, v{t}')
def dppadd(a,v,ctl): a(f'v_add_f32_dpp v{v}, v{v}, v{v} {ctl} row_mask:0xf bank_mask:0xf')
```

```python
from common import *
def gemv_core(a, nld, wbase, sbase, acc, nacc_dw, vm_after, tmp):
    pass

def k0(a):
    a.label('k0_kernel')
    a('s_cmp_ge_u32 s2, 224'); a('s_cbranch_scc1 K0_END')
    ldarg(a,4,'ws'); ldarg(a,6,'wmod'); ldarg(a,8,'c')
    a(f's_mov_b32 s20, {hx(-LOG2E)}')
    a('s_cmp_ge_u32 s2, 192'); a('s_cbranch_scc1 K0_R4')
    a('s_cmp_ge_u32 s2, 160'); a('s_cbranch_scc1 K0_R3')
    a('s_cmp_ge_u32 s2, 96'); a('s_cbranch_scc1 K0_R2')
    ldarg(a,10,'wqkv')
    a('s_and_b32 s12, s2, 15')
    a('s_lshr_b32 s13, s2, 4')
    a('v_lshrrev_b32 v1, 2, v0')
    a('v_lshlrev_b32 v2, 1, v1')
    a('v_mul_u32_u24 v3, 6144, v1')
    a('v_and_b32 v4, 3, v0'); a('v_lshlrev_b32 v4, 4, v4'); a('v_add_u32 v3, v3, v4')
    a('s_lshl_b32 s14, s12, 6'); a('v_add_u32 v3, s14, v3')
    a('v_lshrrev_b32 v5, 7, v0'); a('v_mul_u32_u24 v5, 49152, v5')
    a('v_and_b32 v6, 127, v0'); a('v_lshlrev_b32 v6, 2, v6'); a('v_add_u32 v5, v5, v6')
    a('s_mul_i32 s14, s12, 98304'); a('s_lshl_b32 s15, s13, 9'); a('s_add_u32 s14, s14, s15'); a('v_add_u32 v5, s14, v5')
    a('s_waitcnt lgkmcnt(0)')
    C=8
    S=16; W=32; Q=96; ACC=112; T=128
    for i in range(8): a(f'global_load_ushort v{C+i}, v2, s[8:9] offset:{i*128}')
    for i in range(8):
        a(f'global_load_dwordx4 {vr(W+8*i,4)}, v3, s[6:7]')
        a(f'global_load_dwordx4 {vr(W+8*i+4,4)}, v3, s[6:7] offset:1024')
        if i<7: a('v_add_u32 v3, 393216, v3')
    for j in range(0,16,2):
        a(f'global_load_dword v{Q+j}, v5, s[10:11]'); a(f'global_load_dword v{Q+j+1}, v5, s[10:11] offset:3072')
        if j<14: a('v_add_u32 v5, 6144, v5')
    for i in range(16): a(f'v_mov_b32 v{ACC+i}, 0')
    a('s_waitcnt vmcnt(32)')
    for i in range(8):
        a(f'v_lshlrev_b32 v{C+i}, 16, v{C+i}'); silu(a,S+2*i,C+i,T+i,20)
    for i in range(8): bf16r(a,S+2*i,S+2*i)
    for i in range(8):
        a(f's_waitcnt vmcnt({30-2*i})')
        for d in range(8):
            t=T+2*(d&3)
            unpack(a,t,t+1,W+8*i+d)
            a(f'v_pk_fma_f32 {vr(ACC+2*d,2)}, {vr(t,2)}, {vr(S+2*i,2)}, {vr(ACC+2*d,2)} op_sel_hi:[1,0,1]')
    for c in ('row_ror:4','row_ror:8'):
        for i in range(16): dppadd(a,ACC+i,c)
    a('v_lshrrev_b32 v6, 4, v0'); a('v_lshlrev_b32 v6, 8, v6'); a('v_and_b32 v7, 3, v0'); a('v_lshlrev_b32 v7, 5, v7'); a('v_add_u32 v6, v6, v7')
    a('s_mov_b32 s16, 0x000f000f'); a('s_mov_b32 s17, 0x000f000f'); a('s_mov_b64 exec, s[16:17]')
    a(f'ds_write_b128 v6, {vr(ACC,4)}'); a(f'ds_write_b128 v6, {vr(ACC+4,4)} offset:16')
    a(f'ds_write_b128 v6, {vr(ACC+8,4)} offset:128'); a(f'ds_write_b128 v6, {vr(ACC+12,4)} offset:144')
    a('s_mov_b64 exec, -1')
    a('v_and_b32 v7, 63, v0'); a('v_lshlrev_b32 v6, 2, v7')
    a('s_waitcnt lgkmcnt(0)'); a('s_barrier')
    for i in range(16): a(f'ds_read_b32 v{T+i}, v6 offset:{i*256}')
    a('s_waitcnt lgkmcnt(0)')
    for st in (8,4,2,1):
        for i in range(st): a(f'v_add_f32 v{T+i}, v{T+i}, v{T+i+st}')
    bf16r(a,T,T)
    a(f'v_add_f32 v{T+1}, 1.0, v{T}'); bf16r(a,T+1,T+1)
    a('v_cmp_lt_u32 vcc, 31, v7'); a(f'v_cndmask_b32 v{T}, v{T}, v{T+1}, vcc')
    a('v_readfirstlane_b32 s14, v0'); a('s_lshr_b32 s14, s14, 7'); a('s_lshl_b32 s15, s14, 4')
    for j in range(16):
        a(f's_add_u32 s16, s15, {j}'); a(f'v_readlane_b32 s{32+j}, v{T}, s16')
        a(f's_add_u32 s16, s15, {32+j}'); a(f'v_readlane_b32 s{48+j}, v{T}, s16')
    a('s_waitcnt vmcnt(0)')
    PL=W; PH=W+16; X=W+32
    c2l=T+2; c2h=T+3
    a(f'v_mov_b32 v{c2l}, 0'); a(f'v_mov_b32 v{c2h}, 0')
    for j in range(16):
        t=T+4+2*(j&3)
        unpack(a,t,t+1,Q+j)
        a(f'v_mul_f32 v{PL+j}, s{48+j}, v{t}'); a(f'v_mul_f32 v{PH+j}, s{48+j}, v{t+1}')
        a(f'v_fmac_f32 v{c2l}, s{32+j}, v{t}'); a(f'v_fmac_f32 v{c2h}, s{32+j}, v{t+1}')
    for hf in range(2):
        for d in range(4):
            a(f'v_cvt_pk_bf16_f32 v{X+8*hf+d}, v{PL+8*hf+2*d}, v{PL+8*hf+2*d+1}')
            a(f'v_cvt_pk_bf16_f32 v{X+8*hf+4+d}, v{PH+8*hf+2*d}, v{PH+8*hf+2*d+1}')
    a(f'v_cvt_pk_bf16_f32 v{c2l}, v{c2l}, v{c2h}')
    a('v_and_b32 v6, 127, v0'); a('v_lshrrev_b32 v7, 4, v6'); a(f'v_mul_u32_u24 v7, {NKS*1024}, v7')
    a('v_and_b32 v6, 15, v6'); a('v_lshlrev_b32 v6, 5, v6'); a('v_add_u32 v6, v6, v7')
    a(f's_mul_i32 s16, s13, {8*NKS*1024}'); a(f's_add_u32 s16, s16, {WS_W}')
    a('s_add_u32 s4, s4, s16'); a('s_addc_u32 s5, s5, 0')
    a('s_lshl_b32 s17, s12, 1'); a('s_add_u32 s17, s17, s14')
    a('s_add_u32 s18, s17, 2'); a('s_lshl_b32 s18, s18, 10'); a('v_add_u32 v7, s18, v6')
    a(f'global_store_dwordx4 v7, {vr(X,4)}, s[4:5]'); a(f'global_store_dwordx4 v7, {vr(X+4,4)}, s[4:5] offset:16')
    a(f'global_store_dwordx4 v7, {vr(X+8,4)}, s[4:5] offset:512'); a(f'global_store_dwordx4 v7, {vr(X+12,4)}, s[4:5] offset:528')
    a('s_lshr_b32 s18, s17, 3'); a('s_lshl_b32 s18, s18, 9'); a('s_and_b32 s19, s17, 7'); a('s_lshl_b32 s19, s19, 1'); a('s_add_u32 s18, s18, s19')
    a('v_add_u32 v7, s18, v6')
    a(f'global_store_short v7, v{c2l}, s[4:5]'); a(f'global_store_short_d16_hi v7, v{c2l}, s[4:5] offset:16')
    a('s_endpgm')
    a.label('K0_R2')
    ldarg(a,10,'x')
    a('s_sub_u32 s12, s2, 96')
    a('v_and_b32 v1, 63, v0'); a('v_lshrrev_b32 v2, 6, v0')
    a('v_and_b32 v3, 31, v1'); a('v_lshrrev_b32 v4, 5, v1')
    a('v_lshlrev_b32 v5, 10, v3'); a('v_lshlrev_b32 v6, 8, v2'); a('v_add_u32 v5, v5, v6'); a('v_lshlrev_b32 v6, 4, v4'); a('v_add_u32 v5, v5, v6')
    a('s_lshl_b32 s13, s12, 15'); a('v_add_u32 v5, s13, v5')
    a('s_waitcnt lgkmcnt(0)')
    X=8; F=64
    for i in range(8): a(f'global_load_dwordx4 {vr(X+4*i,4)}, v5, s[10:11] offset:{i*32}')
    a('v_lshlrev_b32 v6, 2, v3'); a('v_lshlrev_b32 v7, 7, v2'); a('v_add_u32 v7, v7, v6')
    for i in range(8):
        a(f's_waitcnt vmcnt({7-i})')
        for d in range(4): unpack(a,F+8*i+2*d,F+8*i+2*d+1,X+4*i+d)
    def reduce_rows(acc, ldsoff):
        a(f'v_add_f32 v{acc}, v{acc}, v{acc+1}')
        halfsum(a,acc,acc+1)
        a(f'ds_write_b32 v7, v{acc} offset:{ldsoff}')
        a('s_waitcnt lgkmcnt(0)'); a('s_barrier')
        for w in range(4): a(f'ds_read_b32 v{acc+w}, v6 offset:{ldsoff+w*128}')
        a('s_waitcnt lgkmcnt(0)')
        a(f'v_add_f32 v{acc}, v{acc}, v{acc+1}'); a(f'v_add_f32 v{acc+2}, v{acc+2}, v{acc+3}'); a(f'v_add_f32 v{acc}, v{acc}, v{acc+2}')
    A=40
    for k in range(4): a(f'v_pk_add_f32 {vr(A+2*k,2)}, {vr(F+2*k,2)}, {vr(F+8+2*k,2)}')
    for i in range(8,32): a(f'v_pk_add_f32 {vr(A+2*(i&3),2)}, {vr(A+2*(i&3),2)}, {vr(F+2*i,2)}')
    a(f'v_pk_add_f32 {vr(A,2)}, {vr(A,2)}, {vr(A+2,2)}'); a(f'v_pk_add_f32 {vr(A+4,2)}, {vr(A+4,2)}, {vr(A+6,2)}'); a(f'v_pk_add_f32 {vr(A,2)}, {vr(A,2)}, {vr(A+4,2)}')
    reduce_rows(A,0)
    a(f'v_mul_f32 v{A+8}, {hx(-1.0/512)}, v{A}')
    for i in range(32): a(f'v_pk_add_f32 {vr(F+2*i,2)}, {vr(F+2*i,2)}, {vr(A+8,2)} op_sel_hi:[1,0]')
    for k in range(4): a(f'v_pk_mul_f32 {vr(A+2*k,2)}, {vr(F+2*k,2)}, {vr(F+2*k,2)}')
    for i in range(4,32): a(f'v_pk_fma_f32 {vr(A+2*(i&3),2)}, {vr(F+2*i,2)}, {vr(F+2*i,2)}, {vr(A+2*(i&3),2)}')
    a(f'v_pk_add_f32 {vr(A,2)}, {vr(A,2)}, {vr(A+2,2)}'); a(f'v_pk_add_f32 {vr(A+4,2)}, {vr(A+4,2)}, {vr(A+6,2)}'); a(f'v_pk_add_f32 {vr(A,2)}, {vr(A,2)}, {vr(A+4,2)}')
    reduce_rows(A,512)
    a(f'v_mov_b32 v{A+8}, {hx(1e-5)}'); a(f'v_fmac_f32 v{A+8}, {hx(1.0/512)}, v{A}'); a(f'v_rsq_f32 v{A+8}, v{A+8}')
    for i in range(32): a(f'v_pk_mul_f32 {vr(F+2*i,2)}, {vr(F+2*i,2)}, {vr(A+8,2)} op_sel_hi:[1,0]')
    for i in range(32): a(f'v_cvt_pk_bf16_f32 v{X+i}, v{F+2*i}, v{F+2*i+1}')
    a('v_lshlrev_b32 v5, 4, v1'); a('v_lshlrev_b32 v6, 13, v2'); a('v_add_u32 v5, v5, v6')
    a(f's_add_u32 s13, s13, {WS_N+4096}'); a('s_add_u32 s4, s4, s13'); a('s_addc_u32 s5, s5, 0')
    for i in range(8): a(f'global_store_dwordx4 v5, {vr(X+4*i,4)}, s[4:5] offset:{i*1024-4096}')
    a('s_endpgm')
    a.label('K0_R3')
    ldarg(a,10,'wr')
    a('s_sub_u32 s12, s2, 160')
    a('v_lshrrev_b32 v1, 3, v0'); a('v_lshlrev_b32 v2, 1, v1'); a('v_mul_u32_u24 v3, 6144, v1')
    a('v_and_b32 v4, 7, v0'); a('v_lshlrev_b32 v4, 4, v4'); a('v_add_u32 v3, v3, v4')
    a('s_lshl_b32 s14, s12, 7'); a('s_add_u32 s14, s14, 2048'); a('v_add_u32 v3, s14, v3')
    a('s_lshl_b32 s15, s12, 10'); a('v_lshlrev_b32 v5, 2, v0'); a('v_add_u32 v5, s15, v5'); a('v_mov_b32 v6, 0')
    a('s_waitcnt lgkmcnt(0)')
    C=8; S=24; W=56; ACC=120; T=128
    for i in range(16): a(f'global_load_ushort v{C+i}, v2, s[8:9] offset:{i*64}')
    for i in range(16):
        a(f'global_load_dwordx4 {vr(W+4*i,4)}, v3, s[6:7]')
        if i<15: a('v_add_u32 v3, 196608, v3')
    addc(a,16,4,WS_ST); a('global_store_dword v5, v6, s[16:17]')
    a('v_and_b32 v7, 63, v0'); a('s_lshl_b32 s15, s12, 6'); a('v_add_u32 v5, s15, v7'); a('v_and_b32 v4, 511, v5'); a('v_lshlrev_b32 v4, 1, v4')
    a('global_load_ushort v4, v4, s[10:11]')
    for i in range(8): a(f'v_mov_b32 v{ACC+i}, 0')
    a('s_waitcnt vmcnt(18)')
    for i in range(16):
        a(f'v_lshlrev_b32 v{C+i}, 16, v{C+i}'); silu(a,S+2*i,C+i,T+i,20)
    for i in range(16): bf16r(a,S+2*i,S+2*i)
    for i in range(16):
        a(f's_waitcnt vmcnt({17-i})')
        for d in range(4):
            t=T+2*d
            unpack(a,t,t+1,W+4*i+d)
            a(f'v_pk_fma_f32 {vr(ACC+2*d,2)}, {vr(t,2)}, {vr(S+2*i,2)}, {vr(ACC+2*d,2)} op_sel_hi:[1,0,1]')
    for i in range(8): dppadd(a,ACC+i,'row_ror:8')
    a('v_lshrrev_b32 v6, 4, v0'); a('v_lshlrev_b32 v6, 8, v6'); a('v_and_b32 v3, 7, v0'); a('v_lshlrev_b32 v3, 5, v3'); a('v_add_u32 v6, v6, v3')
    a('s_mov_b32 s16, 0x00ff00ff'); a('s_mov_b32 s17, 0x00ff00ff'); a('s_mov_b64 exec, s[16:17]')
    a(f'ds_write_b128 v6, {vr(ACC,4)}'); a(f'ds_write_b128 v6, {vr(ACC+4,4)} offset:16')
    a('s_mov_b64 exec, -1')
    a('v_lshlrev_b32 v6, 2, v7')
    a('s_waitcnt lgkmcnt(0)'); a('s_barrier')
    a('v_readfirstlane_b32 s14, v0'); a('s_cmp_ge_u32 s14, 64'); a('s_cbranch_scc1 K0_END')
    for i in range(16): a(f'ds_read_b32 v{T+i}, v6 offset:{i*256}')
    a('s_waitcnt lgkmcnt(0)')
    for st in (8,4,2,1):
        for i in range(st): a(f'v_add_f32 v{T+i}, v{T+i}, v{T+i+st}')
    bf16r(a,T,T)
    a('v_lshlrev_b32 v5, 2, v5')
    addc(a,16,4,WS_MOD)
    a('s_lshr_b32 s14, s12, 3'); a('s_cmp_lg_u32 s14, 2'); a('s_cbranch_scc1 K0_R3S')
    a(f'v_add_f32 v{T}, 1.0, v{T}'); bf16r(a,T,T)
    a('s_waitcnt vmcnt(0)')
    a('v_lshlrev_b32 v4, 16, v4'); a(f'v_mul_f32 v4, v4, v{T}')
    a('global_store_dword v5, v4, s[16:17] offset:4095' if False else 'v_add_u32 v3, 4096, v5')
    a('global_store_dword v3, v4, s[16:17]')
    a.label('K0_R3S')
    a(f'global_store_dword v5, v{T}, s[16:17]')
    a('s_endpgm')
    a.label('K0_R4')
    ldarg(a,10,'wo')
    a('s_sub_u32 s12, s2, 192')
    a('v_lshlrev_b32 v1, 2, v0'); a('s_lshl_b32 s13, s12, 14'); a('v_add_u32 v1, s13, v1')
    a('s_waitcnt lgkmcnt(0)')
    R=8; O=32
    for d in range(16):
        a(f'global_load_dword v{R+d}, v1, s[10:11] offset:{(d&3)*1024}')
        if (d&3)==3 and d<15: a('v_add_u32 v1, 4096, v1')
    a('v_and_b32 v2, 15, v0'); a('v_lshlrev_b32 v2, 1, v2')
    a('v_and_b32 v3, 3, v2'); a('v_bfe_u32 v4, v2, 2, 2'); a('v_lshlrev_b32 v4, 3, v4'); a('v_add_u32 v3, v3, v4')
    a('v_lshrrev_b32 v4, 4, v2'); a('v_lshlrev_b32 v4, 2, v4'); a('v_add_u32 v3, v3, v4'); a('v_lshlrev_b32 v3, 4, v3')
    a('v_lshrrev_b32 v4, 4, v0'); a('v_lshlrev_b32 v4, 15, v4'); a('v_add_u32 v3, v3, v4')
    a('s_lshl_b32 s13, s12, 10'); a(f's_add_u32 s13, s13, {WS_WO}'); a('s_add_u32 s4, s4, s13'); a('s_addc_u32 s5, s5, 0')
    a('s_mov_b32 s14, 0x05040100'); a('s_mov_b32 s15, 0x07060302')
    a('s_waitcnt vmcnt(0)')
    for hf in range(2):
        for dd in range(4):
            e=2*dd; d=(e&3)+8*(e>>2)+4*hf
            a(f'v_perm_b32 v{O+8*hf+dd}, v{R+d+1}, v{R+d}, s14'); a(f'v_perm_b32 v{O+8*hf+4+dd}, v{R+d+1}, v{R+d}, s15')
        a(f'global_store_dwordx4 v3, {vr(O+8*hf,4)}, s[4:5] offset:{hf*512}'); a(f'global_store_dwordx4 v3, {vr(O+8*hf+4,4)}, s[4:5] offset:{hf*512+16}')
    a.label('K0_END')
    a('s_endpgm')
```

```python
from common import *
QSCALE=0.25*LOG2E
def k1(a):
    a.label('k1_kernel')
    a('s_cmp_ge_u32 s2, 256'); a('s_cbranch_scc1 K1_END')
    ldarg(a,4,'ws')
    a('s_and_b32 s6, s2, 7'); a('s_lshr_b32 s7, s2, 3')
    a('s_lshr_b32 s8, s6, 1'); a('s_lshl_b32 s8, s8, 2'); a('s_and_b32 s9, s7, 3'); a('s_add_u32 s8, s8, s9')
    a('s_and_b32 s9, s6, 1'); a('s_lshl_b32 s9, s9, 3'); a('s_lshr_b32 s10, s7, 2'); a('s_add_u32 s9, s9, s10')
    a('v_readfirstlane_b32 s10, v0'); a('s_lshr_b32 s10, s10, 6')
    a('v_and_b32 v1, 63, v0'); a('v_lshlrev_b32 v2, 4, v1')
    a('s_lshl_b32 s11, s8, 2'); a('s_add_u32 s11, s11, s10')
    a(f's_mul_i32 s12, s9, {NKS*1024}')
    a('s_lshl_b32 s13, s10, 11')
    a('s_waitcnt lgkmcnt(0)')
    a('s_add_u32 s18, s12, s13'); a(f's_add_u32 s18, s18, {WS_W+2048}'); a('s_add_u32 s14, s4, s18'); a('s_addc_u32 s15, s5, 0')
    a('s_lshl_b32 s18, s11, 15'); a(f's_add_u32 s18, s18, {WS_N+4096}'); a('s_add_u32 s16, s4, s18'); a('s_addc_u32 s17, s5, 0')
    TS=16*NKS*1024
    for j in range(3): a(f'v_add_u32 v{3+j}, {j*TS}, v2')
    A=128; B=16; ACC=64
    a('s_min_u32 s19, s10, 2'); a(f's_mul_i32 s20, s19, {TS}'); a('s_add_u32 s20, s20, s12'); a(f's_add_u32 s20, s20, {WS_W}')
    a('s_add_u32 s22, s4, s20'); a('s_addc_u32 s23, s5, 0')
    a(f's_mul_i32 s21, s19, {NKS*1024}'); a('s_mov_b32 m0, s21')
    a('global_load_lds_dwordx4 v2, s[22:23]'); a('global_load_lds_dwordx4 v2, s[22:23] offset:1024')
    a('s_add_u32 s24, s13, 2048')
    for c in range(4):
        for j in range(3):
            a(f's_add_u32 m0, s24, {j*NKS*1024+c*8192}')
            a(f'global_load_lds_dwordx4 v{3+j}, s[14:15]'); a(f'global_load_lds_dwordx4 v{3+j}, s[14:15] offset:1024')
        for i in range(8): a(f'global_load_dwordx4 {vr(A+4*(8*c+i),4)}, v2, s[16:17] offset:{i*1024-4096}')
        if c<3:
            a('s_add_u32 s14, s14, 8192'); a('s_addc_u32 s15, s15, 0'); a('s_add_u32 s16, s16, 8192'); a('s_addc_u32 s17, s17, 0')
    for j in range(3): a(f'v_add_u32 v{6+j}, {j*NKS*1024}, v2')
    for i in range(4): a(f'v_mov_b32 v{12+i}, 0x3f803f80')
    steps=[(0,12),(1,12)]+[(2+k,A+4*k) for k in range(32)]
    chunks=[steps[0:10],steps[10:18],steps[18:26],steps[26:34]]
    first=True
    NB=3
    def rd(st,buf):
        for j in range(3): a(f'ds_read_b128 {vr(B+12*buf+4*j,4)}, v{6+j} offset:{st[0]*1024}')
    for c,ch in enumerate(chunks):
        a(f's_waitcnt vmcnt({42-14*c})'); a('s_barrier')
        rd(ch[0],0); rd(ch[1],1)
        for i,st in enumerate(ch):
            if i+2<len(ch): rd(ch[i+2],(i+2)%NB)
            out=min(len(ch)-1-i,2)
            a(f's_waitcnt lgkmcnt({3*out})')
            b=B+12*(i%NB)
            for j in range(3):
                cc='0' if first else vr(ACC+16*j,16)
                if j<2: a(f'v_mfma_f32_32x32x16_bf16 {vr(ACC+16*j,16)}, {vr(b+4*j,4)}, {vr(st[1],4)}, {cc}')
                else:   a(f'v_mfma_f32_32x32x16_bf16 {vr(ACC+16*j,16)}, {vr(st[1],4)}, {vr(b+4*j,4)}, {cc}')
            first=False
    a(f's_mov_b32 s20, {hx(QSCALE)}')
    a('s_lshl_b32 s18, s9, 17'); a('s_lshl_b32 s19, s11, 10'); a('s_add_u32 s18, s18, s19')
    a(f's_add_u32 s19, s18, {WS_Q}'); a('s_add_u32 s14, s4, s19'); a('s_addc_u32 s15, s5, 0')
    a(f's_add_u32 s19, s18, {WS_K}'); a('s_add_u32 s16, s4, s19'); a('s_addc_u32 s17, s5, 0')
    a(f's_add_u32 s19, s18, {WS_V}'); a('s_add_u32 s22, s4, s19'); a('s_addc_u32 s23, s5, 0')
    a('v_add_u32 v3, 0x10000, v2')
    a('v_bfe_u32 v4, v1, 4, 1'); a('v_lshlrev_b32 v4, 16, v4'); a('v_lshrrev_b32 v5, 5, v1'); a('v_lshlrev_b32 v5, 8, v5'); a('v_add_u32 v4, v4, v5')
    a('v_and_b32 v5, 15, v1'); a('v_lshlrev_b32 v5, 4, v5'); a('v_add_u32 v4, v4, v5')
    for r in range(0,16,2): a(f'v_pk_mul_f32 {vr(ACC+r,2)}, {vr(ACC+r,2)}, s[20:21] op_sel_hi:[1,0]')
    O=16
    for j in range(3):
        for d in range(8): a(f'v_cvt_pk_bf16_f32 v{O+8*j+d}, v{ACC+16*j+2*d}, v{ACC+16*j+2*d+1}')
        if j<2:
            sb=14+2*j
            a(f'global_store_dwordx4 v2, {vr(O+8*j,4)}, s[{sb}:{sb+1}]'); a(f'global_store_dwordx4 v3, {vr(O+8*j+4,4)}, s[{sb}:{sb+1}]')
        else:
            a(f'global_store_dwordx4 v4, {vr(O+8*j,4)}, s[22:23]'); a(f'global_store_dwordx4 v4, {vr(O+8*j+4,4)}, s[22:23] offset:512')
    a.label('K1_END'); a('s_endpgm')
```

```python
from common import *
NEG=hx(-1e30)
def k2(a):
    a.label('k2_kernel')
    a('s_cmp_ge_u32 s2, 256'); a('s_cbranch_scc1 K2_END')
    ldarg(a,4,'ws')
    a('s_and_b32 s6, s2, 7'); a('s_lshr_b32 s7, s2, 3')
    a('s_lshr_b32 s8, s6, 1'); a('s_lshl_b32 s8, s8, 1'); a('s_and_b32 s9, s7, 1'); a('s_add_u32 s8, s8, s9')
    a('s_and_b32 s9, s6, 1'); a('s_lshl_b32 s9, s9, 4'); a('s_lshr_b32 s10, s7, 1'); a('s_add_u32 s9, s9, s10')
    a('v_readfirstlane_b32 s10, v0'); a('s_lshr_b32 s10, s10, 6')
    a('v_and_b32 v1, 63, v0'); a('v_lshlrev_b32 v2, 4, v1')
    a('s_lshl_b32 s11, s9, 6'); a('s_lshl_b32 s12, s8, 3'); a('s_add_u32 s11, s11, s12')
    a('s_lshl_b32 s13, s10, 1'); a('s_add_u32 s13, s13, s11'); a('s_lshl_b32 s13, s13, 10')
    a('s_add_u32 s14, s11, s10'); a('s_lshl_b32 s14, s14, 10')
    a('s_waitcnt lgkmcnt(0)')
    a(f's_add_u32 s15, s13, {WS_K-8192}'); a('s_add_u32 s16, s4, s15'); a('s_addc_u32 s17, s5, 0')
    a(f's_add_u32 s15, s13, {WS_V-8192}'); a('s_add_u32 s18, s4, s15'); a('s_addc_u32 s19, s5, 0')
    a(f's_add_u32 s15, s14, {WS_Q}'); a('s_add_u32 s20, s4, s15'); a('s_addc_u32 s21, s5, 0')
    KL=0; VL=16384; OL=32768
    a('s_lshl_b32 s22, s10, 11'); a('s_mov_b32 m0, s22')
    a('global_load_lds_dwordx4 v2, s[16:17]'); a('global_load_lds_dwordx4 v2, s[16:17] offset:1024')
    Q=4
    a(f'global_load_dwordx4 {vr(Q,4)}, v2, s[20:21]')
    a(f's_add_u32 m0, s22, {VL}')
    a('global_load_lds_dwordx4 v2, s[18:19]'); a('global_load_lds_dwordx4 v2, s[18:19] offset:1024')
    for i in range(4): a(f'v_mov_b32 v{8+i}, 0x3f803f80')
    a('v_lshlrev_b32 v3, 4, v0')
    a(f'ds_write_b128 v3, {vr(8,4)} offset:{OL}'); a(f'ds_write_b128 v3, {vr(8,4)} offset:{OL+8192}')
    S=96
    a('v_and_b32 v12, 31, v1'); a('v_lshrrev_b32 v13, 5, v1'); a('v_lshlrev_b32 v14, 2, v13'); a('v_sub_u32 v12, v12, v14')
    a(f'v_mov_b32 v14, {NEG}'); a('v_mov_b32 v15, 0')
    a('s_sub_u32 s23, 8, s10'); a('s_cmp_eq_u32 s8, 0'); a('s_cselect_b32 s23, s23, 0')
    for r in range(16):
        c=(r&3)+8*(r>>2)
        a(f'v_cmp_ge_i32 vcc, v12, {c}')
        a(f'v_cndmask_b32 v{S+128+r}, v14, v15, vcc'); a(f'v_cndmask_b32 v{S+r}, v15, v14, vcc')
    a('s_lshl_b32 s24, s10, 10'); a('v_add_u32 v3, s24, v2')
    a('v_and_b32 v8, 15, v1'); a('v_lshlrev_b32 v8, 4, v8'); a('v_lshlrev_b32 v9, 8, v13'); a('v_add_u32 v8, v8, v9')
    a(f's_add_u32 s24, s24, {VL}'); a('v_add_u32 v8, s24, v8'); a(f'v_mov_b32 v9, {OL}')
    a('v_and_b32 v10, 16, v1'); a('v_cmp_eq_u32 vcc, 0, v10'); a('v_cndmask_b32 v8, v9, v8, vcc')
    a('s_cmp_eq_u32 s23, 0'); a('s_cbranch_scc1 K2_NOINV')
    for i in range(8):
        a(f's_cmp_le_u32 s23, {i}'); a('s_cbranch_scc1 K2_NOINV')
        for r in range(16): a(f'v_mov_b32 v{S+16*i+r}, v14')
    a.label('K2_NOINV')
    a('s_waitcnt vmcnt(2) lgkmcnt(0)'); a('s_barrier')
    KB=16
    for i in range(9): a(f'ds_read_b128 {vr(KB+4*i,4)}, v3 offset:{i*1024}')
    for i in range(9):
        a(f's_waitcnt lgkmcnt({8-i})')
        d=vr(S+16*i,16)
        if i in (0,8):
            a(f'v_mfma_f32_32x32x16_bf16 {d}, {vr(KB+4*i,4)}, {vr(Q,4)}, {d}')
        else:
            a(f's_cmp_gt_u32 s23, {i}'); a(f's_cbranch_scc1 K2_I{i}')
            a(f'v_mfma_f32_32x32x16_bf16 {d}, {vr(KB+4*i,4)}, {vr(Q,4)}, 0'); a(f's_branch K2_J{i}')
            a.label(f'K2_I{i}')
            a(f'v_mfma_f32_32x32x16_bf16 {d}, {vr(KB+4*i,4)}, {vr(Q,4)}, {d}')
            a.label(f'K2_J{i}')
    a('s_waitcnt vmcnt(0)'); a('s_barrier')
    VB=16; NV=18
    for i in range(9):
        for m in range(2): a(f'ds_read_b128 {vr(VB+8*i+4*m,4)}, v8 offset:{i*1024+m*512}')
    M=88
    for k in range(4): a(f'v_max3_f32 v{M+k}, v{S+3*k}, v{S+3*k+1}, v{S+3*k+2}')
    idx=12; k=0
    while idx<144:
        a(f'v_max3_f32 v{M+k}, v{M+k}, v{S+idx}, v{S+idx+1}'); idx+=2; k=(k+1)&3
    a(f'v_max3_f32 v{M}, v{M}, v{M+1}, v{M+2}'); a(f'v_max_f32 v{M}, v{M}, v{M+3}')
    halfsum(a,M,M+1,'v_max_f32')
    a(f'v_sub_f32 v{M}, 0, v{M}')
    O=240
    for i in range(9):
        b=S+16*i
        for r in range(0,16,2): a(f'v_pk_add_f32 {vr(b+r,2)}, {vr(b+r,2)}, {vr(M,2)} op_sel_hi:[1,0]')
        for r in range(16): a(f'v_exp_f32 v{b+r}, v{b+r}')
        for r in range(8): a(f'v_cvt_pk_bf16_f32 v{b+r}, v{b+2*r}, v{b+2*r+1}')
        if i==0: a('s_waitcnt lgkmcnt(0)')
        for m in range(2):
            cc='0' if (i==0 and m==0) else vr(O,16)
            a(f'v_mfma_f32_32x32x16_bf16 {vr(O,16)}, {vr(VB+8*i+4*m,4)}, {vr(b+4*m,4)}, {cc}')
    a(f'v_rcp_f32 v{M}, v{O+8}')
    for r in range(0,8,2): a(f'v_pk_mul_f32 {vr(O+r,2)}, {vr(O+r,2)}, {vr(M,2)} op_sel_hi:[1,0]')
    for d in range(4): a(f'v_cvt_pk_bf16_f32 v{4+d}, v{O+2*d}, v{O+2*d+1}')
    a('s_lshl_b32 s12, s8, 3'); a('s_add_u32 s12, s12, s10'); a('s_lshl_b32 s12, s12, 5'); a('s_add_u32 s12, s12, s9'); a('s_lshl_b32 s12, s12, 10')
    a(f's_add_u32 s12, s12, {WS_O}'); a('s_add_u32 s4, s4, s12'); a('s_addc_u32 s5, s5, 0')
    a(f'global_store_dwordx4 v2, {vr(4,4)}, s[4:5]')
    a.label('K2_END'); a('s_endpgm')
```

```python
from common import *
def k3(a):
    a.label('k3_kernel')
    a('s_cmp_ge_u32 s2, 256'); a('s_cbranch_scc1 K3_END')
    ldarg(a,4,'ws'); ldarg(a,26,'x')
    a('s_and_b32 s6, s2, 7'); a('s_lshr_b32 s7, s2, 3')
    a('s_lshr_b32 s8, s6, 1'); a('s_lshl_b32 s8, s8, 3'); a('s_and_b32 s9, s7, 7'); a('s_add_u32 s8, s8, s9')
    a('s_and_b32 s9, s6, 1'); a('s_lshl_b32 s9, s9, 2'); a('s_lshr_b32 s10, s7, 3'); a('s_add_u32 s9, s9, s10')
    a('v_readfirstlane_b32 s10, v0'); a('s_lshr_b32 s10, s10, 6')
    a('s_lshr_b32 s11, s10, 1'); a('s_and_b32 s12, s10, 1')
    a('v_and_b32 v1, 63, v0'); a('v_lshlrev_b32 v2, 4, v1')
    a('s_lshl_b32 s13, s8, 1'); a('s_add_u32 s13, s13, s12'); a('s_lshl_b32 s13, s13, 15'); a(f's_add_u32 s13, s13, {WS_O}')
    a('s_lshl_b32 s14, s9, 1'); a('s_add_u32 s14, s14, s12'); a('s_lshl_b32 s14, s14, 15'); a(f's_add_u32 s14, s14, {WS_WO}')
    a('s_cmp_eq_u32 s11, 0'); a('s_cselect_b32 s13, s13, s14')
    a('s_lshl_b32 s15, s10, 15')
    a('s_waitcnt lgkmcnt(0)')
    a('s_add_u32 s16, s4, s13'); a('s_addc_u32 s17, s5, 0')
    for c in range(8):
        a(f's_add_u32 m0, s15, {c*4096}')
        for i in range(4): a(f'global_load_lds_dwordx4 v2, s[16:17] offset:{i*1024}')
        if c<7: a('s_add_u32 s16, s16, 4096'); a('s_addc_u32 s17, s17, 0')
    a('v_and_b32 v3, 31, v1'); a('v_lshrrev_b32 v4, 5, v1')
    a('s_lshl_b32 s18, s8, 6'); a('s_lshl_b32 s19, s11, 5'); a('s_add_u32 s18, s18, s19'); a('v_add_u32 v5, s18, v3')
    a('s_lshl_b32 s18, s9, 6'); a('s_lshl_b32 s19, s12, 5'); a('s_add_u32 s18, s18, s19'); a('v_lshlrev_b32 v6, 4, v4'); a('v_add_u32 v6, s18, v6')
    a('v_lshlrev_b32 v7, 10, v5'); a('v_lshlrev_b32 v8, 1, v6'); a('v_add_u32 v7, v7, v8')
    a('v_lshlrev_b32 v8, 2, v6')
    X=16; GA=24; U=40
    addc(a,20,4,WS_MOD); addc(a,22,4,WS_MOD+8192)
    a(f'global_load_dwordx4 {vr(X,4)}, v7, s[26:27]'); a(f'global_load_dwordx4 {vr(X+4,4)}, v7, s[26:27] offset:16')
    for i in range(4): a(f'global_load_dwordx4 {vr(GA+4*i,4)}, v8, s[20:21] offset:{16*i}')
    for i in range(4): a(f'global_load_dwordx4 {vr(U+4*i,4)}, v8, s[22:23] offset:{16*i}')
    E=10
    a('s_lshl_b32 s18, s11, 15'); a('v_add_u32 v9, s18, v2')
    a('s_lshl_b32 s18, s12, 15'); a('s_add_u32 s18, s18, 65536'); a('v_add_u32 v10, s18, v2')
    B=64; ACC=96; NB=4
    def rd(k):
        a(f'ds_read_b128 {vr(B+8*(k%NB),4)}, v10 offset:{k*1024}'); a(f'ds_read_b128 {vr(B+8*(k%NB)+4,4)}, v9 offset:{k*1024}')
    for c in range(4):
        a(f's_waitcnt vmcnt({24-8*c+E})'); a('s_barrier')
        for i in range(3): rd(8*c+i)
        for i in range(8):
            k=8*c+i
            if i+3<8: rd(k+3)
            a(f's_waitcnt lgkmcnt({2*min(7-i,3)})')
            cc='0' if k==0 else vr(ACC,16)
            a(f'v_mfma_f32_32x32x16_bf16 {vr(ACC,16)}, {vr(B+8*(k%NB),4)}, {vr(B+8*(k%NB)+4,4)}, {cc}')
    a('s_waitcnt vmcnt(0)')
    T=64
    XF=80
    for d in range(8): unpack(a,XF+2*d,XF+2*d+1,X+d)
    for d in range(8): a(f'v_cvt_pk_bf16_f32 v{T+d}, v{ACC+2*d}, v{ACC+2*d+1}')
    for d in range(8): unpack(a,ACC+2*d,ACC+2*d+1,T+d)
    for d in range(8): a(f'v_pk_mul_f32 {vr(ACC+2*d,2)}, {vr(ACC+2*d,2)}, {vr(GA+2*d,2)}')
    for d in range(8): a(f'v_cvt_pk_bf16_f32 v{T+d}, v{ACC+2*d}, v{ACC+2*d+1}')
    for d in range(8): unpack(a,ACC+2*d,ACC+2*d+1,T+d)
    for d in range(8): a(f'v_pk_add_f32 {vr(ACC+2*d,2)}, {vr(ACC+2*d,2)}, {vr(XF+2*d,2)}')
    for d in range(8): a(f'v_cvt_pk_bf16_f32 v{T+d}, v{ACC+2*d}, v{ACC+2*d+1}')
    addc(a,20,4,WS_X1)
    a(f'global_store_dwordx4 v7, {vr(T,4)}, s[20:21]'); a(f'global_store_dwordx4 v7, {vr(T+4,4)}, s[20:21] offset:16')
    for d in range(8): unpack(a,ACC+2*d,ACC+2*d+1,T+d)
    S1=XF; S2=XF+2; S3=XF+4
    a(f'v_pk_add_f32 {vr(S1,2)}, {vr(ACC,2)}, {vr(ACC+2,2)}'); a(f'v_pk_mul_f32 {vr(S2,2)}, {vr(ACC,2)}, {vr(ACC,2)}'); a(f'v_pk_mul_f32 {vr(S3,2)}, {vr(ACC,2)}, {vr(U,2)}')
    for d in range(1,8):
        if d>1: a(f'v_pk_add_f32 {vr(S1,2)}, {vr(S1,2)}, {vr(ACC+2*d,2)}')
        a(f'v_pk_fma_f32 {vr(S2,2)}, {vr(ACC+2*d,2)}, {vr(ACC+2*d,2)}, {vr(S2,2)}')
        a(f'v_pk_fma_f32 {vr(S3,2)}, {vr(ACC+2*d,2)}, {vr(U+2*d,2)}, {vr(S3,2)}')
    for s in (S1,S2,S3):
        a(f'v_add_f32 v{s}, v{s}, v{s+1}'); halfsum(a,s,s+1)
    a('s_mul_i32 s18, s12, 768'); a('s_lshl_b32 s19, s11, 7'); a('s_add_u32 s18, s18, s19'); a('s_add_u32 s18, s18, 131072')
    a('v_lshlrev_b32 v3, 2, v3'); a('v_add_u32 v3, s18, v3')
    a(f'ds_write_b32 v3, v{S1}'); a(f'ds_write_b32 v3, v{S2} offset:256'); a(f'ds_write_b32 v3, v{S3} offset:512')
    a('s_lshl_b32 s18, s10, 8'); a('s_add_u32 s18, s18, 131072'); a('v_lshlrev_b32 v4, 2, v1'); a('v_add_u32 v5, s18, v4')
    a('s_lshl_b32 s18, s10, 13'); a('s_lshl_b32 s19, s8, 8'); a('s_add_u32 s18, s18, s19'); a(f's_add_u32 s18, s18, {WS_ST}')
    a('s_add_u32 s4, s4, s18'); a('s_addc_u32 s5, s5, 0')
    a('s_waitcnt lgkmcnt(0)'); a('s_barrier')
    a('s_cmp_ge_u32 s10, 3'); a('s_cbranch_scc1 K3_END')
    a('ds_read_b32 v6, v5'); a('ds_read_b32 v7, v5 offset:768')
    a('s_waitcnt lgkmcnt(0)')
    a('v_add_f32 v6, v6, v7')
    a('global_atomic_add_f32 v4, v6, s[4:5]')
    a.label('K3_END'); a('s_endpgm')
```

```python
from common import *
NMOE=86
def rowstats(a,s1,s2,mean,rstd,t):
    a(f'v_mul_f32 v{mean}, {hx(1.0/512)}, v{s1}')
    a(f'v_mul_f32 v{t}, v{mean}, v{mean}'); a(f'v_mul_f32 v{rstd}, {hx(1.0/512)}, v{s2}'); a(f'v_sub_f32 v{rstd}, v{rstd}, v{t}')
    a(f'v_max_f32 v{rstd}, 0, v{rstd}'); a(f'v_add_f32 v{rstd}, {hx(1e-5)}, v{rstd}'); a(f'v_rsq_f32 v{rstd}, v{rstd}')
def h2calc(a,F,n,mean,rstd,CB,SB,T):
    for d in range(0,n,2): a(f'v_pk_add_f32 {vr(F+d,2)}, {vr(F+d,2)}, {vr(mean,2)} op_sel_hi:[1,0] neg_lo:[0,1] neg_hi:[0,1]')
    for d in range(0,n,2): a(f'v_pk_mul_f32 {vr(F+d,2)}, {vr(F+d,2)}, {vr(rstd,2)} op_sel_hi:[1,0]')
    def rnd():
        for d in range(0,n,2): a(f'v_cvt_pk_bf16_f32 v{T+d//2}, v{F+d}, v{F+d+1}')
        for d in range(0,n,2): unpack(a,F+d,F+d+1,T+d//2)
    rnd()
    for d in range(0,n,2): a(f'v_pk_mul_f32 {vr(F+d,2)}, {vr(F+d,2)}, {vr(CB+d,2)}')
    rnd()
    for d in range(0,n,2): a(f'v_pk_add_f32 {vr(F+d,2)}, {vr(F+d,2)}, {vr(SB+d,2)}')
    rnd()
def top2step(a,k1,k2,b1,b2,lo):
    a(f'v_min_u32 v{lo}, v{k1}, v{b1}'); a(f'v_max_u32 v{k1}, v{k1}, v{b1}'); a(f'v_max3_u32 v{k2}, v{lo}, v{k2}, v{b2}')
def k4(a):
    a.label('k4_kernel')
    a(f's_cmp_ge_u32 s2, {NMOE+128}'); a('s_cbranch_scc1 K4_END')
    ldarg(a,4,'ws')
    a(f's_cmp_ge_u32 s2, {NMOE}'); a('s_cbranch_scc1 K4_OUT')
    ldarg(a,6,'wg'); ldarg(a,8,'wu'); ldarg(a,10,'wr')
    a('v_lshrrev_b32 v1, 2, v0'); a('v_mul_u32_u24 v1, 2752, v1'); a('v_and_b32 v2, 1, v0'); a('v_lshlrev_b32 v2, 4, v2'); a('v_add_u32 v1, v1, v2')
    a('s_lshl_b32 s12, s2, 5'); a('v_add_u32 v1, s12, v1')
    a('v_lshlrev_b32 v3, 5, v0')
    a('v_lshlrev_b32 v4, 3, v0')
    a('v_lshlrev_b32 v5, 2, v0')
    a('s_waitcnt lgkmcnt(0)')
    addc(a,14,4,WS_ST); addc(a,16,4,WS_ST+8192); addc(a,18,4,WS_ST+16384); addc(a,20,4,WS_MOD)
    ST=16
    for s in range(3):
        a(f'global_load_dwordx4 {vr(ST+8*s,4)}, v3, s[{14+2*s}:{15+2*s}]'); a(f'global_load_dwordx4 {vr(ST+8*s+4,4)}, v3, s[{14+2*s}:{15+2*s}] offset:16')
    a('global_load_dwordx2 v[40:41], v4, s[20:21] offset:2048')
    a('v_add_u32 v6, 4096, v4')
    a('global_load_dwordx2 v[42:43], v6, s[20:21]')
    a('v_add_u32 v6, 8192, v4')
    a('global_load_dwordx2 v[44:45], v6, s[20:21]')
    a('global_load_dword v46, v5, s[10:11]')
    a('v_and_b32 v2, 2, v0'); a('v_cmp_eq_u32 vcc, 0, v2')
    a('v_mov_b32 v8, s8'); a('v_mov_b32 v9, s9'); a('v_mov_b32 v10, s6'); a('v_mov_b32 v11, s7')
    a('v_cndmask_b32 v8, v8, v10, vcc'); a('v_cndmask_b32 v9, v9, v11, vcc')
    a('v_add_co_u32 v8, vcc, v8, v1'); a('v_addc_co_u32 v9, vcc, 0, v9, vcc')
    W=64
    for i in range(8):
        a(f'global_load_dwordx4 {vr(W+4*i,4)}, v[8:9], off')
        if i<7: a(f'v_add_co_u32 v8, vcc, {64*2752}, v8'); a('v_addc_co_u32 v9, vcc, 0, v9, vcc')
    a('s_waitcnt vmcnt(8)')
    unpack(a,47,48,46)
    a('v_mul_f32 v47, v47, v40'); a('v_fmac_f32 v47, v48, v41')
    a('v_add_f32 v48, v44, v45')
    for v in (47,48):
        for c in ('quad_perm:[1,0,3,2]','quad_perm:[2,3,0,1]','row_half_mirror','row_mirror'): dppadd(a,v,c)
        a(f'v_mov_b32 v49, v{v}'); a(f'v_permlane16_swap_b32 v{v}, v49'); a(f'v_add_f32 v{v}, v{v}, v49')
        halfsum(a,v,49)
    a('v_lshrrev_b32 v12, 6, v0'); a('v_lshlrev_b32 v13, 3, v12')
    a('ds_write_b64 v13, v[47:48]' if False else 'v_mov_b32 v50, v47'); a('v_mov_b32 v51, v48')
    a('ds_write_b64 v13, v[50:51]')
    a('ds_write_b64 v4, v[40:41] offset:1024'); a('ds_write_b64 v4, v[42:43] offset:3072')
    a('v_mov_b32 v13, 0')
    a('s_waitcnt lgkmcnt(0)'); a('s_barrier')
    a('ds_read_b128 v[52:55], v13'); a('ds_read_b128 v[56:59], v13 offset:16')
    a('s_waitcnt lgkmcnt(0)')
    a('v_add_f32 v52, v52, v54'); a('v_add_f32 v56, v56, v58'); a('v_add_f32 v52, v52, v56')
    a('v_add_f32 v53, v53, v55'); a('v_add_f32 v57, v57, v59'); a('v_add_f32 v53, v53, v57')
    K1,K2=54,55
    a(f'v_mov_b32 v{K1}, 0'); a(f'v_mov_b32 v{K2}, 0')
    a('v_lshlrev_b32 v12, 3, v0'); a('v_sub_u32 v12, 0x7ff, v12')
    for i in range(8):
        m,rs,t=56,57,58
        rowstats(a,ST+i,ST+8+i,m,rs,t)
        a(f'v_fma_f32 v{t}, -v{m}, v53, v{ST+16+i}'); a(f'v_fma_f32 v{t}, v{rs}, v{t}, v52')
        a(f'v_cvt_pk_bf16_f32 v{t}, v{t}, v{t}'); a(f'v_and_b32 v{t}, 0xffff, v{t}')
        a(f'v_bfe_i32 v59, v{t}, 15, 1'); a('v_or_b32 v59, 0x8000, v59'); a(f'v_xor_b32 v{t}, v{t}, v59'); a(f'v_lshlrev_b32 v{t}, 16, v{t}')
        a(f'v_subrev_u32 v59, {i}, v12'); a(f'v_or_b32 v{t}, v{t}, v59')
        a(f'v_med3_u32 v{K2}, v{K1}, v{K2}, v{t}'); a(f'v_max_u32 v{K1}, v{K1}, v{t}')
    for c in ('quad_perm:[1,0,3,2]','quad_perm:[2,3,0,1]','row_half_mirror','row_mirror'):
        a(f'v_mov_b32_dpp v56, v{K1} {c} row_mask:0xf bank_mask:0xf'); a(f'v_mov_b32_dpp v57, v{K2} {c} row_mask:0xf bank_mask:0xf')
        top2step(a,K1,K2,56,57,58)
    for sw in ('v_permlane16_swap_b32','v_permlane32_swap_b32'):
        a(f'v_mov_b32 v56, v{K1}'); a(f'v_mov_b32 v57, v{K2}'); a(f'{sw} v{K1}, v56'); a(f'{sw} v{K2}, v57')
        top2step(a,K1,K2,56,57,58)
    a('v_lshrrev_b32 v12, 6, v0'); a('v_lshlrev_b32 v13, 3, v12')
    a(f'ds_write_b64 v13, v[{K1}:{K2}] offset:64')
    a('v_mov_b32 v13, 0')
    a('s_waitcnt lgkmcnt(0)'); a('s_barrier')
    a('ds_read_b128 v[56:59], v13 offset:64'); a('ds_read_b128 v[60:63], v13 offset:80')
    a('s_waitcnt lgkmcnt(0)')
    top2step(a,56,57,58,59,12); top2step(a,60,61,62,63,12); top2step(a,56,57,60,61,12)
    a('v_readfirstlane_b32 s22, v56'); a('v_readfirstlane_b32 s23, v57'); a('v_readfirstlane_b32 s24, v0')
    a('s_lshr_b32 s24, s24, 6')
    a('s_and_b32 s25, s22, 0x7ff'); a('s_sub_u32 s25, 0x7ff, s25'); a('s_and_b32 s26, s23, 0x7ff'); a('s_sub_u32 s26, 0x7ff, s26')
    a('s_cmp_ge_u32 s24, 2'); a('s_cbranch_scc1 K4_H2DONE')
    a('s_cmp_eq_u32 s24, 0'); a('s_cselect_b32 s27, s25, s26'); a('s_cselect_b32 s28, s22, s23')
    a('v_and_b32 v12, 63, v0'); a('v_lshlrev_b32 v13, 4, v12')
    a('s_lshl_b32 s29, s27, 10'); a(f's_add_u32 s29, s29, {WS_X1}'); a('s_add_u32 s30, s4, s29'); a('s_addc_u32 s31, s5, 0')
    a('global_load_dwordx4 v[16:19], v13, s[30:31]')
    a('s_lshl_b32 s29, s27, 2'); a('v_mov_b32 v14, s29')
    a('global_load_dword v20, v14, s[14:15]'); a('global_load_dword v21, v14, s[16:17]')
    a('v_lshlrev_b32 v14, 5, v12')
    a('ds_read_b128 v[32:35], v14 offset:1024'); a('ds_read_b128 v[36:39], v14 offset:1040')
    a('ds_read_b128 v[40:43], v14 offset:3072'); a('ds_read_b128 v[44:47], v14 offset:3088')
    a('s_waitcnt vmcnt(0) lgkmcnt(0)')
    rowstats(a,20,21,22,24,23)
    for d in range(4): unpack(a,48+2*d,49+2*d,16+d)
    h2calc(a,48,8,22,24,40,32,26)
    a('s_lshl_b32 s29, s24, 2'); a('v_lshlrev_b32 v15, 6, v12'); a('v_add_u32 v15, s29, v15')
    for d in range(8): a(f'ds_write_b32 v15, v{48+d} offset:{8192+8*d}')
    a('s_cmp_lg_u32 s2, 0'); a('s_cbranch_scc1 K4_H2DONE')
    a('s_lshl_b32 s29, s24, 11'); a(f's_add_u32 s29, s29, {WS_SEL+64}'); a('s_add_u32 s30, s4, s29'); a('s_addc_u32 s31, s5, 0')
    a('global_store_dwordx4 v14, v[48:51], s[30:31]'); a('global_store_dwordx4 v14, v[52:55], s[30:31] offset:16')
    a('s_lshr_b32 s28, s28, 16'); a('s_and_b32 s29, s28, 0x8000'); a('s_cmp_lg_u32 s29, 0'); a('s_mov_b32 s33, 0xffff'); a('s_cselect_b32 s29, 0x8000, s33'); a('s_xor_b32 s28, s28, s29'); a('s_lshl_b32 s28, s28, 16')
    a('v_mov_b32 v16, s28'); a(f'v_mul_f32 v16, {hx(-LOG2E)}, v16'); a('v_exp_f32 v16, v16'); a('v_add_f32 v16, 1.0, v16'); a('v_rcp_f32 v16, v16'); bf16r(a,16,16)
    a('v_mov_b32 v17, v16'); a('v_mov_b32 v16, s27')
    a('s_lshl_b32 s29, s24, 3'); a('v_mov_b32 v18, s29'); addc(a,30,4,WS_SEL)
    a('global_store_dwordx2 v18, v[16:17], s[30:31]')
    a.label('K4_H2DONE')
    a('s_waitcnt lgkmcnt(0)'); a('s_barrier')
    a('v_lshrrev_b32 v12, 2, v0'); a('v_lshlrev_b32 v12, 3, v12')
    H=16
    for i in range(8): a(f'ds_read_b64 {vr(H+2*i,2)}, v12 offset:{8192+512*i}')
    ACC=32
    for i in range(16): a(f'v_mov_b32 v{ACC+i}, 0')
    a('s_waitcnt vmcnt(0) lgkmcnt(0)')
    for i in range(8):
        for d in range(4):
            t=48+2*d
            unpack(a,t,t+1,W+4*i+d)
            a(f'v_pk_fma_f32 {vr(ACC+4*d,2)}, {vr(t,2)}, {vr(H+2*i,2)}, {vr(ACC+4*d,2)} op_sel_hi:[0,1,1]')
            a(f'v_pk_fma_f32 {vr(ACC+4*d+2,2)}, {vr(t,2)}, {vr(H+2*i,2)}, {vr(ACC+4*d+2,2)} op_sel:[1,0,0] op_sel_hi:[1,1,1]')
    for c in ('row_ror:4','row_ror:8'):
        for i in range(16): dppadd(a,ACC+i,c)
    a('v_lshrrev_b32 v12, 4, v0'); a('v_lshlrev_b32 v12, 8, v12'); a('v_and_b32 v13, 3, v0'); a('v_lshlrev_b32 v13, 6, v13'); a('v_add_u32 v12, v12, v13')
    a('s_mov_b32 s16, 0x000f000f'); a('s_mov_b32 s17, 0x000f000f'); a('s_mov_b64 exec, s[16:17]')
    for i in range(4): a(f'ds_write_b128 v12, {vr(ACC+4*i,4)} offset:{16384+16*i}')
    a('s_mov_b64 exec, -1')
    a('s_waitcnt lgkmcnt(0)'); a('s_barrier')
    a('s_cmp_ge_u32 s24, 1'); a('s_cbranch_scc1 K4_END')
    a('v_lshlrev_b32 v12, 2, v0')
    for i in range(16): a(f'ds_read_b32 v{16+i}, v12 offset:{16384+256*i}')
    a('s_waitcnt lgkmcnt(0)')
    for st in (8,4,2,1):
        for i in range(st): a(f'v_add_f32 v{16+i}, v{16+i}, v{16+i+st}')
    bf16r(a,16,16)
    a('v_mov_b32 v17, v16'); a('v_permlane32_swap_b32 v16, v17')
    a(f's_mov_b32 s20, {hx(-LOG2E)}')
    silu(a,18,16,19,20); bf16r(a,18,18); a('v_mul_f32 v18, v18, v17'); bf16r(a,18,18)
    a('s_lshl_b32 s12, s2, 7'); a(f's_add_u32 s12, s12, {WS_ACT}'); a('s_add_u32 s4, s4, s12'); a('s_addc_u32 s5, s5, 0')
    a('s_mov_b32 exec_hi, 0')
    a('global_store_dword v12, v18, s[4:5]')
    a('s_endpgm')
    a.label('K4_OUT')
    ldarg(a,6,'out')
    a(f's_sub_u32 s12, s2, {NMOE}')
    a('v_and_b32 v1, 63, v0'); a('v_lshrrev_b32 v2, 6, v0')
    a('s_lshl_b32 s13, s12, 4'); a('v_add_u32 v2, s13, v2')
    a('v_lshlrev_b32 v3, 10, v2'); a('v_lshlrev_b32 v4, 4, v1'); a('v_add_u32 v3, v3, v4'); a('v_add_u32 v7, 4096, v3')
    a('v_lshlrev_b32 v5, 2, v2'); a('v_lshlrev_b32 v6, 5, v1')
    a('s_waitcnt lgkmcnt(0)')
    addc(a,8,4,WS_X1); addc(a,14,4,WS_ST); addc(a,16,4,WS_ST+8192); addc(a,20,4,WS_MOD+2048); addc(a,22,4,WS_MOD+6144)
    X=16
    a('v_add_u32 v8, 0x2000, v3'); a('v_add_u32 v9, 0x3000, v3')
    offs=[3,7,8,9]
    for i in range(4): a(f'global_load_dwordx4 {vr(X+4*i,4)}, v{offs[i]}, s[8:9]')
    for i in range(4):
        a(f'global_load_dword v{32+i}, v5, s[14:15] offset:{16*i}'); a(f'global_load_dword v{36+i}, v5, s[16:17] offset:{16*i}')
    SB=40; CB=48; GB=56
    a(f'global_load_dwordx4 {vr(SB,4)}, v6, s[20:21]'); a(f'global_load_dwordx4 {vr(SB+4,4)}, v6, s[20:21] offset:16')
    a(f'global_load_dwordx4 {vr(CB,4)}, v6, s[20:21] offset:2048'); a(f'global_load_dwordx4 {vr(CB+4,4)}, v6, s[20:21] offset:2064')
    a(f'global_load_dwordx4 {vr(GB,4)}, v6, s[22:23]'); a(f'global_load_dwordx4 {vr(GB+4,4)}, v6, s[22:23] offset:16')
    a('s_waitcnt vmcnt(0)')
    for i in range(4):
        F=64; XF=72; T=80
        rowstats(a,32+i,36+i,84,86,85)
        for d in range(4): unpack(a,F+2*d,F+2*d+1,X+4*i+d)
        for d in range(8): a(f'v_mov_b32 v{XF+d}, v{F+d}')
        h2calc(a,F,8,84,86,CB,SB,T)
        for d in range(0,8,2): a(f'v_pk_mul_f32 {vr(F+d,2)}, {vr(F+d,2)}, {vr(GB+d,2)}')
        for d in range(4): a(f'v_cvt_pk_bf16_f32 v{T+d}, v{F+2*d}, v{F+2*d+1}')
        for d in range(4): unpack(a,F+2*d,F+2*d+1,T+d)
        for d in range(0,8,2): a(f'v_pk_add_f32 {vr(F+d,2)}, {vr(F+d,2)}, {vr(XF+d,2)}')
        for d in range(4): a(f'v_cvt_pk_bf16_f32 v{88+4*i+d}, v{F+2*d}, v{F+2*d+1}')
        a(f'global_store_dwordx4 v{offs[i]}, {vr(88+4*i,4)}, s[6:7]')
    a.label('K4_END'); a('s_endpgm')

def k5(a):
    a.label('k5_kernel')
    a('s_cmp_ge_u32 s2, 32'); a('s_cbranch_scc1 K5_END')
    ldarg(a,4,'ws'); ldarg(a,6,'wd'); ldarg(a,16,'out')
    a('v_lshrrev_b32 v1, 1, v0'); a('v_and_b32 v2, 1, v0')
    a('v_lshlrev_b32 v3, 10, v1'); a('v_lshlrev_b32 v4, 4, v2'); a('v_add_u32 v3, v3, v4'); a('s_lshl_b32 s12, s2, 5'); a('v_add_u32 v3, s12, v3')
    a('v_lshlrev_b32 v5, 3, v1')
    a('s_waitcnt lgkmcnt(0)')
    a('s_mov_b32 s8, s6'); a('s_mov_b32 s9, s7'); a(f's_mov_b32 s10, {1376*1024}'); a('s_mov_b32 s11, 0x00020000')
    a(f's_add_u32 s20, s4, {WS_ACT}'); a('s_addc_u32 s21, s5, 0'); a(f's_mov_b32 s22, {1376*8}'); a('s_mov_b32 s23, 0x00020000')
    W=16; H=48
    for i in range(6):
        a(f'buffer_load_dwordx4 {vr(W+4*i,4)}, v3, s[8:11], 0 offen')
        if i<5: a('v_add_u32 v3, 0x40000, v3')
    for i in range(6): a(f'buffer_load_dwordx2 {vr(H+2*i,2)}, v5, s[20:23], 0 offen offset:{0}'); a('v_add_u32 v5, 2048, v5')
    addc(a,24,4,WS_SEL)
    a('v_and_b32 v6, 31, v0'); a('v_lshrrev_b32 v7, 4, v6'); a('v_and_b32 v8, 15, v0'); a('s_lshl_b32 s13, s2, 4'); a('v_add_u32 v8, s13, v8')
    a('v_lshlrev_b32 v9, 3, v7')
    a('global_load_dwordx2 v[10:11], v9, s[24:25]')
    a('v_lshlrev_b32 v9, 11, v7'); a('v_lshlrev_b32 v12, 2, v8'); a('v_add_u32 v9, v9, v12')
    a('global_load_dword v13, v9, s[24:25] offset:64')
    addc(a,26,4,WS_MOD+6144)
    a('global_load_dword v14, v12, s[26:27]')
    ACC=64
    for i in range(16): a(f'v_mov_b32 v{ACC+i}, 0')
    a('s_waitcnt vmcnt(2)')
    a('v_lshlrev_b32 v9, 10, v10'); a('v_lshlrev_b32 v12, 1, v8'); a('v_add_u32 v9, v9, v12')
    addc(a,28,4,WS_X1)
    a('global_load_ushort v15, v9, s[28:29]')
    for i in range(6):
        for d in range(4):
            t=80+2*d
            unpack(a,t,t+1,W+4*i+d)
            a(f'v_pk_fma_f32 {vr(ACC+4*d,2)}, {vr(t,2)}, {vr(H+2*i,2)}, {vr(ACC+4*d,2)} op_sel_hi:[0,1,1]')
            a(f'v_pk_fma_f32 {vr(ACC+4*d+2,2)}, {vr(t,2)}, {vr(H+2*i,2)}, {vr(ACC+4*d+2,2)} op_sel:[1,0,0] op_sel_hi:[1,1,1]')
    for c in ('quad_perm:[2,3,0,1]','row_ror:4','row_ror:8'):
        for i in range(16): dppadd(a,ACC+i,c)
    a('v_lshrrev_b32 v12, 4, v0'); a('v_lshlrev_b32 v12, 7, v12'); a('v_lshlrev_b32 v2, 6, v2'); a('v_add_u32 v12, v12, v2')
    a('s_mov_b32 s14, 0x00030003'); a('s_mov_b32 s15, 0x00030003'); a('s_mov_b64 exec, s[14:15]')
    for i in range(4): a(f'ds_write_b128 v12, {vr(ACC+4*i,4)} offset:{16*i}')
    a('s_mov_b64 exec, -1')
    a('s_waitcnt lgkmcnt(0)'); a('s_barrier')
    a('v_readfirstlane_b32 s14, v0'); a('s_cmp_ge_u32 s14, 64'); a('s_cbranch_scc1 K5_END')
    a('v_and_b32 v12, 15, v0'); a('v_lshrrev_b32 v2, 3, v12'); a('v_lshlrev_b32 v2, 6, v2'); a('v_and_b32 v12, 7, v12'); a('v_lshlrev_b32 v12, 3, v12'); a('v_add_u32 v12, v12, v2')
    a('v_lshlrev_b32 v2, 2, v7'); a('v_add_u32 v12, v12, v2'); a('v_lshrrev_b32 v2, 5, v0'); a('v_lshlrev_b32 v2, 11, v2'); a('v_add_u32 v12, v12, v2')
    for i in range(16): a(f'ds_read_b32 v{16+i}, v12 offset:{128*i}')
    a('s_waitcnt lgkmcnt(0)')
    for st in (8,4,2,1):
        for i in range(st): a(f'v_add_f32 v{16+i}, v{16+i}, v{16+i+st}')
    halfsum(a,16,17)
    a('s_waitcnt vmcnt(0)')
    bf16r(a,16,16); a('v_mul_f32 v16, v16, v11'); bf16r(a,16,16)
    a('v_add_f32 v16, v16, v13'); bf16r(a,16,16); a('v_mul_f32 v16, v16, v14'); bf16r(a,16,16)
    a('v_lshlrev_b32 v15, 16, v15'); a('v_add_f32 v16, v16, v15'); a('v_cvt_pk_bf16_f32 v16, v16, v16')
    a('s_mov_b32 exec_hi, 0')
    a('global_store_short v9, v16, s[16:17]')
    a.label('K5_END'); a('s_endpgm')
```

```python
import sys, importlib
from common import *
import k0,k1,k2,k3,k4
KS=[('k0_kernel',k0.k0,224,256,8192,160),('k1_kernel',k1.k1,256,256,3*NKS*1024,256),('k2_kernel',k2.k2,256,512,49152,256),
    ('k3_kernel',k3.k3,256,256,131072+2048,128),('k4_kernel',k4.k4,k4.NMOE+128,256,24576,128),('k5_kernel',k4.k5,32,512,8192,128)]
def build(path,prof=False):
    hdr=open('cdna_kernels/%s.s.ref'%NAME).read().split('\n')
    top=[l for l in hdr if l.startswith(';') and '@launch' not in l and 'Override launch' not in l and 'grid=ceil' not in l]
    out=top[:]
    for n,f,g,b,l,v in KS: out.append(f'; @launch kernel={n} grid=({g},1,1) block=({b},1,1) lds={l}')
    out+=['.amdgcn_target "amdgcn-amd-amdhsa--gfx950"','.text']
    for n,f,g,b,l,v in KS:
        a=Asm(); f(a)
        L=a.lines
        if prof:
            ki=[k[0] for k in KS].index(n)
            L=[L[0],'s_memrealtime s[92:93]']+[(f'S_BR' if l=='s_endpgm' else l) for l in L[1:]]
            L=[l.replace('S_BR',f's_branch FIN{ki}') for l in L]
            L+=[f'FIN{ki}:','s_waitcnt vmcnt(0) lgkmcnt(0)','s_memrealtime s[96:97]','s_load_dwordx2 s[94:95], s[0:1], 88','s_mov_b64 exec, 1','s_waitcnt lgkmcnt(0)',
                f's_sub_u32 s94, s94, {ki*512-ki*8}','s_subb_u32 s95, s95, 0','v_mov_b32 v1, 0','s_not_b32 s92, s92','v_mov_b32 v2, s92','v_mov_b32 v3, s96',
                'global_atomic_umax v1, v2, s[94:95]','global_atomic_umax v1, v3, s[94:95] offset:4','s_endpgm']
        lines=fix_hazards(L)
        out+=[f'.globl {n}','.p2align 8',f'.type {n},@function']+lines
    out+=['.section .rodata,"a"']
    for n,f,g,b,l,v in KS:
        out+=['.p2align 6',f'.amdhsa_kernel {n}',f'  .amdhsa_next_free_vgpr {v}','  .amdhsa_next_free_sgpr 102',f'  .amdhsa_accum_offset {v}',
              '  .amdhsa_group_segment_fixed_size 0','  .amdhsa_kernarg_size 104','  .amdhsa_user_sgpr_count 2','  .amdhsa_user_sgpr_kernarg_segment_ptr 1',
              '  .amdhsa_system_sgpr_workgroup_id_x 1','.end_amdhsa_kernel']
    open(path,'w').write('\n'.join(out)+'\n')
if __name__=='__main__':
    build(sys.argv[1] if len(sys.argv)>1 else 'cdna_kernels/%s.s'%NAME, len(sys.argv)>2)
```

```python
from common import *
def gemv_core(a, nld, wbase, sbase, acc, nacc_dw, vm_after, tmp):
    pass

def k0(a):
    a.label('k0_kernel')
    a('s_cmp_ge_u32 s2, 224'); a('s_cbranch_scc1 K0_END')
    ldarg(a,4,'ws'); ldarg(a,6,'wmod'); ldarg(a,8,'c')
    a(f's_mov_b32 s20, {hx(-LOG2E)}')
    a('s_cmp_ge_u32 s2, 192'); a('s_cbranch_scc1 K0_R4')
    a('s_cmp_ge_u32 s2, 160'); a('s_cbranch_scc1 K0_R3')
    a('s_cmp_ge_u32 s2, 96'); a('s_cbranch_scc1 K0_R2')
    ldarg(a,10,'wqkv')
    a('s_and_b32 s12, s2, 15')
    a('s_lshr_b32 s13, s2, 4')
    a('v_lshrrev_b32 v1, 2, v0')
    a('v_lshlrev_b32 v2, 1, v1')
    a('v_mul_u32_u24 v3, 6144, v1')
    a('v_and_b32 v4, 3, v0'); a('v_lshlrev_b32 v4, 4, v4'); a('v_add_u32 v3, v3, v4')
    a('s_lshl_b32 s14, s12, 6'); a('v_add_u32 v3, s14, v3')
    a('v_lshrrev_b32 v5, 7, v0'); a('v_mul_u32_u24 v5, 49152, v5')
    a('v_and_b32 v6, 127, v0'); a('v_lshlrev_b32 v6, 2, v6'); a('v_add_u32 v5, v5, v6')
    a('s_mul_i32 s14, s12, 98304'); a('s_lshl_b32 s15, s13, 9'); a('s_add_u32 s14, s14, s15'); a('v_add_u32 v5, s14, v5')
    a('s_waitcnt lgkmcnt(0)')
    C=8
    a(';TS1')
    S=16; W=32; Q=96; ACC=112; T=128
    for i in range(8): a(f'global_load_ushort v{C+i}, v2, s[8:9] offset:{i*128}')
    for i in range(8):
        a(f'global_load_dwordx4 {vr(W+8*i,4)}, v3, s[6:7]')
        a(f'global_load_dwordx4 {vr(W+8*i+4,4)}, v3, s[6:7] offset:1024')
        if i<7: a('v_add_u32 v3, 393216, v3')
    for j in range(0,16,2):
        a(f'global_load_dword v{Q+j}, v5, s[10:11]'); a(f'global_load_dword v{Q+j+1}, v5, s[10:11] offset:3072')
        if j<14: a('v_add_u32 v5, 6144, v5')
    for i in range(16): a(f'v_mov_b32 v{ACC+i}, 0')
    a('s_waitcnt vmcnt(32)')
    a(';TS2')
    for i in range(8):
        a(f'v_lshlrev_b32 v{C+i}, 16, v{C+i}'); silu(a,S+2*i,C+i,T+i,20)
    for i in range(8): bf16r(a,S+2*i,S+2*i)
    for i in range(8):
        a(f's_waitcnt vmcnt({30-2*i})')
        for d in range(8):
            t=T+2*(d&3)
            unpack(a,t,t+1,W+8*i+d)
            a(f'v_pk_fma_f32 {vr(ACC+2*d,2)}, {vr(t,2)}, {vr(S+2*i,2)}, {vr(ACC+2*d,2)} op_sel_hi:[1,0,1]')
    for c in ('row_ror:4','row_ror:8'):
        for i in range(16): dppadd(a,ACC+i,c)
    a('v_lshrrev_b32 v6, 4, v0'); a('v_lshlrev_b32 v6, 8, v6'); a('v_and_b32 v7, 3, v0'); a('v_lshlrev_b32 v7, 5, v7'); a('v_add_u32 v6, v6, v7')
    a('s_mov_b32 s16, 0x000f000f'); a('s_mov_b32 s17, 0x000f000f'); a('s_mov_b64 exec, s[16:17]')
    a(f'ds_write_b128 v6, {vr(ACC,4)}'); a(f'ds_write_b128 v6, {vr(ACC+4,4)} offset:16')
    a(f'ds_write_b128 v6, {vr(ACC+8,4)} offset:128'); a(f'ds_write_b128 v6, {vr(ACC+12,4)} offset:144')
    a('s_mov_b64 exec, -1')
    a('v_and_b32 v7, 63, v0'); a('v_lshlrev_b32 v6, 2, v7')
    a('s_waitcnt lgkmcnt(0)'); a('s_barrier')
    a(';TS3')
    for i in range(16): a(f'ds_read_b32 v{T+i}, v6 offset:{i*256}')
    a('s_waitcnt lgkmcnt(0)')
    for st in (8,4,2,1):
        for i in range(st): a(f'v_add_f32 v{T+i}, v{T+i}, v{T+i+st}')
    bf16r(a,T,T)
    a(f'v_add_f32 v{T+1}, 1.0, v{T}'); bf16r(a,T+1,T+1)
    a('v_cmp_lt_u32 vcc, 31, v7'); a(f'v_cndmask_b32 v{T}, v{T}, v{T+1}, vcc')
    a('v_readfirstlane_b32 s14, v0'); a('s_lshr_b32 s14, s14, 7'); a('s_lshl_b32 s15, s14, 4')
    for j in range(16):
        a(f's_add_u32 s16, s15, {j}'); a(f'v_readlane_b32 s{32+j}, v{T}, s16')
        a(f's_add_u32 s16, s15, {32+j}'); a(f'v_readlane_b32 s{48+j}, v{T}, s16')
    a('s_waitcnt vmcnt(0)')
    PL=W; PH=W+16; X=W+32
    a(';TS4')
    c2l=T+2; c2h=T+3
    a(f'v_mov_b32 v{c2l}, 0'); a(f'v_mov_b32 v{c2h}, 0')
    for j in range(16):
        t=T+4+2*(j&3)
        unpack(a,t,t+1,Q+j)
        a(f'v_mul_f32 v{PL+j}, s{48+j}, v{t}'); a(f'v_mul_f32 v{PH+j}, s{48+j}, v{t+1}')
        a(f'v_fmac_f32 v{c2l}, s{32+j}, v{t}'); a(f'v_fmac_f32 v{c2h}, s{32+j}, v{t+1}')
    for hf in range(2):
        for d in range(4):
            a(f'v_cvt_pk_bf16_f32 v{X+8*hf+d}, v{PL+8*hf+2*d}, v{PL+8*hf+2*d+1}')
            a(f'v_cvt_pk_bf16_f32 v{X+8*hf+4+d}, v{PH+8*hf+2*d}, v{PH+8*hf+2*d+1}')
    a(f'v_cvt_pk_bf16_f32 v{c2l}, v{c2l}, v{c2h}')
    a('v_and_b32 v6, 127, v0'); a('v_lshrrev_b32 v7, 4, v6'); a(f'v_mul_u32_u24 v7, {NKS*1024}, v7')
    a('v_and_b32 v6, 15, v6'); a('v_lshlrev_b32 v6, 5, v6'); a('v_add_u32 v6, v6, v7')
    a(f's_mul_i32 s16, s13, {8*NKS*1024}'); a(f's_add_u32 s16, s16, {WS_W}')
    a('s_add_u32 s4, s4, s16'); a('s_addc_u32 s5, s5, 0')
    a('s_lshl_b32 s17, s12, 1'); a('s_add_u32 s17, s17, s14')
    a('s_add_u32 s18, s17, 2'); a('s_lshl_b32 s18, s18, 10'); a('v_add_u32 v7, s18, v6')
    a(f'global_store_dwordx4 v7, {vr(X,4)}, s[4:5]'); a(f'global_store_dwordx4 v7, {vr(X+4,4)}, s[4:5] offset:16')
    a(f'global_store_dwordx4 v7, {vr(X+8,4)}, s[4:5] offset:512'); a(f'global_store_dwordx4 v7, {vr(X+12,4)}, s[4:5] offset:528')
    a('s_lshr_b32 s18, s17, 3'); a('s_lshl_b32 s18, s18, 9'); a('s_and_b32 s19, s17, 7'); a('s_lshl_b32 s19, s19, 1'); a('s_add_u32 s18, s18, s19')
    a('v_add_u32 v7, s18, v6')
    a(f'global_store_short v7, v{c2l}, s[4:5]'); a(f'global_store_short_d16_hi v7, v{c2l}, s[4:5] offset:16')
    a('s_endpgm')
    a.label('K0_R2')
    ldarg(a,10,'x')
    a('s_sub_u32 s12, s2, 96')
    a('v_and_b32 v1, 63, v0'); a('v_lshrrev_b32 v2, 6, v0')
    a('v_and_b32 v3, 31, v1'); a('v_lshrrev_b32 v4, 5, v1')
    a('v_lshlrev_b32 v5, 10, v3'); a('v_lshlrev_b32 v6, 8, v2'); a('v_add_u32 v5, v5, v6'); a('v_lshlrev_b32 v6, 4, v4'); a('v_add_u32 v5, v5, v6')
    a('s_lshl_b32 s13, s12, 15'); a('v_add_u32 v5, s13, v5')
    a('s_waitcnt lgkmcnt(0)')
    X=8; F=64
    for i in range(8): a(f'global_load_dwordx4 {vr(X+4*i,4)}, v5, s[10:11] offset:{i*32}')
    a('v_lshlrev_b32 v6, 2, v3'); a('v_lshlrev_b32 v7, 7, v2'); a('v_add_u32 v7, v7, v6')
    for i in range(8):
        a(f's_waitcnt vmcnt({7-i})')
        for d in range(4): unpack(a,F+8*i+2*d,F+8*i+2*d+1,X+4*i+d)
    def reduce_rows(acc, ldsoff):
        a(f'v_add_f32 v{acc}, v{acc}, v{acc+1}')
        halfsum(a,acc,acc+1)
        a(f'ds_write_b32 v7, v{acc} offset:{ldsoff}')
        a('s_waitcnt lgkmcnt(0)'); a('s_barrier')
        for w in range(4): a(f'ds_read_b32 v{acc+w}, v6 offset:{ldsoff+w*128}')
        a('s_waitcnt lgkmcnt(0)')
        a(f'v_add_f32 v{acc}, v{acc}, v{acc+1}'); a(f'v_add_f32 v{acc+2}, v{acc+2}, v{acc+3}'); a(f'v_add_f32 v{acc}, v{acc}, v{acc+2}')
    A=40
    for k in range(4): a(f'v_pk_add_f32 {vr(A+2*k,2)}, {vr(F+2*k,2)}, {vr(F+8+2*k,2)}')
    for i in range(8,32): a(f'v_pk_add_f32 {vr(A+2*(i&3),2)}, {vr(A+2*(i&3),2)}, {vr(F+2*i,2)}')
    a(f'v_pk_add_f32 {vr(A,2)}, {vr(A,2)}, {vr(A+2,2)}'); a(f'v_pk_add_f32 {vr(A+4,2)}, {vr(A+4,2)}, {vr(A+6,2)}'); a(f'v_pk_add_f32 {vr(A,2)}, {vr(A,2)}, {vr(A+4,2)}')
    reduce_rows(A,0)
    a(f'v_mul_f32 v{A+8}, {hx(-1.0/512)}, v{A}')
    for i in range(32): a(f'v_pk_add_f32 {vr(F+2*i,2)}, {vr(F+2*i,2)}, {vr(A+8,2)} op_sel_hi:[1,0]')
    for k in range(4): a(f'v_pk_mul_f32 {vr(A+2*k,2)}, {vr(F+2*k,2)}, {vr(F+2*k,2)}')
    for i in range(4,32): a(f'v_pk_fma_f32 {vr(A+2*(i&3),2)}, {vr(F+2*i,2)}, {vr(F+2*i,2)}, {vr(A+2*(i&3),2)}')
    a(f'v_pk_add_f32 {vr(A,2)}, {vr(A,2)}, {vr(A+2,2)}'); a(f'v_pk_add_f32 {vr(A+4,2)}, {vr(A+4,2)}, {vr(A+6,2)}'); a(f'v_pk_add_f32 {vr(A,2)}, {vr(A,2)}, {vr(A+4,2)}')
    reduce_rows(A,512)
    a(f'v_mov_b32 v{A+8}, {hx(1e-5)}'); a(f'v_fmac_f32 v{A+8}, {hx(1.0/512)}, v{A}'); a(f'v_rsq_f32 v{A+8}, v{A+8}')
    for i in range(32): a(f'v_pk_mul_f32 {vr(F+2*i,2)}, {vr(F+2*i,2)}, {vr(A+8,2)} op_sel_hi:[1,0]')
    for i in range(32): a(f'v_cvt_pk_bf16_f32 v{X+i}, v{F+2*i}, v{F+2*i+1}')
    a('v_lshlrev_b32 v5, 4, v1'); a('v_lshlrev_b32 v6, 13, v2'); a('v_add_u32 v5, v5, v6')
    a(f's_add_u32 s13, s13, {WS_N+4096}'); a('s_add_u32 s4, s4, s13'); a('s_addc_u32 s5, s5, 0')
    for i in range(8): a(f'global_store_dwordx4 v5, {vr(X+4*i,4)}, s[4:5] offset:{i*1024-4096}')
    a('s_endpgm')
    a.label('K0_R3')
    ldarg(a,10,'wr')
    a('s_sub_u32 s12, s2, 160')
    a('v_lshrrev_b32 v1, 3, v0'); a('v_lshlrev_b32 v2, 1, v1'); a('v_mul_u32_u24 v3, 6144, v1')
    a('v_and_b32 v4, 7, v0'); a('v_lshlrev_b32 v4, 4, v4'); a('v_add_u32 v3, v3, v4')
    a('s_lshl_b32 s14, s12, 7'); a('s_add_u32 s14, s14, 2048'); a('v_add_u32 v3, s14, v3')
    a('s_lshl_b32 s15, s12, 10'); a('v_lshlrev_b32 v5, 2, v0'); a('v_add_u32 v5, s15, v5'); a('v_mov_b32 v6, 0')
    a('s_waitcnt lgkmcnt(0)')
    C=8; S=24; W=56; ACC=120; T=128
    for i in range(16): a(f'global_load_ushort v{C+i}, v2, s[8:9] offset:{i*64}')
    for i in range(16):
        a(f'global_load_dwordx4 {vr(W+4*i,4)}, v3, s[6:7]')
        if i<15: a('v_add_u32 v3, 196608, v3')
    addc(a,16,4,WS_ST); a('global_store_dword v5, v6, s[16:17]')
    a('v_and_b32 v7, 63, v0'); a('s_lshl_b32 s15, s12, 6'); a('v_add_u32 v5, s15, v7'); a('v_and_b32 v4, 511, v5'); a('v_lshlrev_b32 v4, 1, v4')
    a('global_load_ushort v4, v4, s[10:11]')
    for i in range(8): a(f'v_mov_b32 v{ACC+i}, 0')
    a('s_waitcnt vmcnt(18)')
    for i in range(16):
        a(f'v_lshlrev_b32 v{C+i}, 16, v{C+i}'); silu(a,S+2*i,C+i,T+i,20)
    for i in range(16): bf16r(a,S+2*i,S+2*i)
    for i in range(16):
        a(f's_waitcnt vmcnt({17-i})')
        for d in range(4):
            t=T+2*d
            unpack(a,t,t+1,W+4*i+d)
            a(f'v_pk_fma_f32 {vr(ACC+2*d,2)}, {vr(t,2)}, {vr(S+2*i,2)}, {vr(ACC+2*d,2)} op_sel_hi:[1,0,1]')
    for i in range(8): dppadd(a,ACC+i,'row_ror:8')
    a('v_lshrrev_b32 v6, 4, v0'); a('v_lshlrev_b32 v6, 8, v6'); a('v_and_b32 v3, 7, v0'); a('v_lshlrev_b32 v3, 5, v3'); a('v_add_u32 v6, v6, v3')
    a('s_mov_b32 s16, 0x00ff00ff'); a('s_mov_b32 s17, 0x00ff00ff'); a('s_mov_b64 exec, s[16:17]')
    a(f'ds_write_b128 v6, {vr(ACC,4)}'); a(f'ds_write_b128 v6, {vr(ACC+4,4)} offset:16')
    a('s_mov_b64 exec, -1')
    a('v_lshlrev_b32 v6, 2, v7')
    a('s_waitcnt lgkmcnt(0)'); a('s_barrier')
    a('v_readfirstlane_b32 s14, v0'); a('s_cmp_ge_u32 s14, 64'); a('s_cbranch_scc1 K0_END')
    for i in range(16): a(f'ds_read_b32 v{T+i}, v6 offset:{i*256}')
    a('s_waitcnt lgkmcnt(0)')
    for st in (8,4,2,1):
        for i in range(st): a(f'v_add_f32 v{T+i}, v{T+i}, v{T+i+st}')
    bf16r(a,T,T)
    a('v_lshlrev_b32 v5, 2, v5')
    addc(a,16,4,WS_MOD)
    a('s_lshr_b32 s14, s12, 3'); a('s_cmp_lg_u32 s14, 2'); a('s_cbranch_scc1 K0_R3S')
    a(f'v_add_f32 v{T}, 1.0, v{T}'); bf16r(a,T,T)
    a('s_waitcnt vmcnt(0)')
    a('v_lshlrev_b32 v4, 16, v4'); a(f'v_mul_f32 v4, v4, v{T}')
    a('global_store_dword v5, v4, s[16:17] offset:4095' if False else 'v_add_u32 v3, 4096, v5')
    a('global_store_dword v3, v4, s[16:17]')
    a.label('K0_R3S')
    a(f'global_store_dword v5, v{T}, s[16:17]')
    a('s_endpgm')
    a.label('K0_R4')
    ldarg(a,10,'wo')
    a('s_sub_u32 s12, s2, 192')
    a('v_lshlrev_b32 v1, 2, v0'); a('s_lshl_b32 s13, s12, 14'); a('v_add_u32 v1, s13, v1')
    a('s_waitcnt lgkmcnt(0)')
    R=8; O=32
    for d in range(16):
        a(f'global_load_dword v{R+d}, v1, s[10:11] offset:{(d&3)*1024}')
        if (d&3)==3 and d<15: a('v_add_u32 v1, 4096, v1')
    a('v_and_b32 v2, 15, v0'); a('v_lshlrev_b32 v2, 1, v2')
    a('v_and_b32 v3, 3, v2'); a('v_bfe_u32 v4, v2, 2, 2'); a('v_lshlrev_b32 v4, 3, v4'); a('v_add_u32 v3, v3, v4')
    a('v_lshrrev_b32 v4, 4, v2'); a('v_lshlrev_b32 v4, 2, v4'); a('v_add_u32 v3, v3, v4'); a('v_lshlrev_b32 v3, 4, v3')
    a('v_lshrrev_b32 v4, 4, v0'); a('v_lshlrev_b32 v4, 15, v4'); a('v_add_u32 v3, v3, v4')
    a('s_lshl_b32 s13, s12, 10'); a(f's_add_u32 s13, s13, {WS_WO}'); a('s_add_u32 s4, s4, s13'); a('s_addc_u32 s5, s5, 0')
    a('s_mov_b32 s14, 0x05040100'); a('s_mov_b32 s15, 0x07060302')
    a('s_waitcnt vmcnt(0)')
    for hf in range(2):
        for dd in range(4):
            e=2*dd; d=(e&3)+8*(e>>2)+4*hf
            a(f'v_perm_b32 v{O+8*hf+dd}, v{R+d+1}, v{R+d}, s14'); a(f'v_perm_b32 v{O+8*hf+4+dd}, v{R+d+1}, v{R+d}, s15')
        a(f'global_store_dwordx4 v3, {vr(O+8*hf,4)}, s[4:5] offset:{hf*512}'); a(f'global_store_dwordx4 v3, {vr(O+8*hf+4,4)}, s[4:5] offset:{hf*512+16}')
    a.label('K0_END')
    a('s_endpgm')
```

```python
from common import *
QSCALE=0.25*LOG2E
def k1(a):
    a.label('k1_kernel')
    a('s_cmp_ge_u32 s2, 256'); a('s_cbranch_scc1 K1_END')
    ldarg(a,4,'ws')
    a('s_and_b32 s6, s2, 7'); a('s_lshr_b32 s7, s2, 3')
    a('s_lshr_b32 s8, s6, 1'); a('s_lshl_b32 s8, s8, 2'); a('s_and_b32 s9, s7, 3'); a('s_add_u32 s8, s8, s9')
    a('s_and_b32 s9, s6, 1'); a('s_lshl_b32 s9, s9, 3'); a('s_lshr_b32 s10, s7, 2'); a('s_add_u32 s9, s9, s10')
    a('v_readfirstlane_b32 s10, v0'); a('s_lshr_b32 s10, s10, 6')
    a('v_and_b32 v1, 63, v0'); a('v_lshlrev_b32 v2, 4, v1')
    a('s_lshl_b32 s11, s8, 2'); a('s_add_u32 s11, s11, s10')
    a(f's_mul_i32 s12, s9, {NKS*1024}')
    a('s_lshl_b32 s13, s10, 11')
    a('s_waitcnt lgkmcnt(0)'); a(';TS1')
    a('s_add_u32 s18, s12, s13'); a(f's_add_u32 s18, s18, {WS_W+2048}'); a('s_add_u32 s14, s4, s18'); a('s_addc_u32 s15, s5, 0')
    a('s_lshl_b32 s18, s11, 15'); a(f's_add_u32 s18, s18, {WS_N+4096}'); a('s_add_u32 s16, s4, s18'); a('s_addc_u32 s17, s5, 0')
    TS=16*NKS*1024
    for j in range(3): a(f'v_add_u32 v{3+j}, {j*TS}, v2')
    A=128; B=16; ACC=64
    a('s_min_u32 s19, s10, 2'); a(f's_mul_i32 s20, s19, {TS}'); a('s_add_u32 s20, s20, s12'); a(f's_add_u32 s20, s20, {WS_W}')
    a('s_add_u32 s22, s4, s20'); a('s_addc_u32 s23, s5, 0')
    a(f's_mul_i32 s21, s19, {NKS*1024}'); a('s_mov_b32 m0, s21')
    a('global_load_lds_dwordx4 v2, s[22:23]'); a('global_load_lds_dwordx4 v2, s[22:23] offset:1024')
    a('s_add_u32 s24, s13, 2048')
    for c in range(4):
        for j in range(3):
            a(f's_add_u32 m0, s24, {j*NKS*1024+c*8192}')
            a(f'global_load_lds_dwordx4 v{3+j}, s[14:15]'); a(f'global_load_lds_dwordx4 v{3+j}, s[14:15] offset:1024')
        for i in range(8): a(f'global_load_dwordx4 {vr(A+4*(8*c+i),4)}, v2, s[16:17] offset:{i*1024-4096}')
        if c<3:
            a('s_add_u32 s14, s14, 8192'); a('s_addc_u32 s15, s15, 0'); a('s_add_u32 s16, s16, 8192'); a('s_addc_u32 s17, s17, 0')
    for j in range(3): a(f'v_add_u32 v{6+j}, {j*NKS*1024}, v2')
    for i in range(4): a(f'v_mov_b32 v{12+i}, 0x3f803f80')
    steps=[(0,12),(1,12)]+[(2+k,A+4*k) for k in range(32)]
    chunks=[steps[0:10],steps[10:18],steps[18:26],steps[26:34]]
    first=True
    NB=3
    def rd(st,buf):
        for j in range(3): a(f'ds_read_b128 {vr(B+12*buf+4*j,4)}, v{6+j} offset:{st[0]*1024}')
    for c,ch in enumerate(chunks):
        a(f's_waitcnt vmcnt({42-14*c})'); a('s_barrier')
        if c==0: a(';TS2')
        if c==3: a(';TS3')
        rd(ch[0],0); rd(ch[1],1)
        for i,st in enumerate(ch):
            if i+2<len(ch): rd(ch[i+2],(i+2)%NB)
            out=min(len(ch)-1-i,2)
            a(f's_waitcnt lgkmcnt({3*out})')
            b=B+12*(i%NB)
            for j in range(3):
                cc='0' if first else vr(ACC+16*j,16)
                if j<2: a(f'v_mfma_f32_32x32x16_bf16 {vr(ACC+16*j,16)}, {vr(b+4*j,4)}, {vr(st[1],4)}, {cc}')
                else:   a(f'v_mfma_f32_32x32x16_bf16 {vr(ACC+16*j,16)}, {vr(st[1],4)}, {vr(b+4*j,4)}, {cc}')
            first=False
    a(';TS4')
    a(f's_mov_b32 s20, {hx(QSCALE)}')
    a('s_lshl_b32 s18, s9, 17'); a('s_lshl_b32 s19, s11, 10'); a('s_add_u32 s18, s18, s19')
    a(f's_add_u32 s19, s18, {WS_Q}'); a('s_add_u32 s14, s4, s19'); a('s_addc_u32 s15, s5, 0')
    a(f's_add_u32 s19, s18, {WS_K}'); a('s_add_u32 s16, s4, s19'); a('s_addc_u32 s17, s5, 0')
    a(f's_add_u32 s19, s18, {WS_V}'); a('s_add_u32 s22, s4, s19'); a('s_addc_u32 s23, s5, 0')
    a('v_add_u32 v3, 0x10000, v2')
    a('v_bfe_u32 v4, v1, 4, 1'); a('v_lshlrev_b32 v4, 16, v4'); a('v_lshrrev_b32 v5, 5, v1'); a('v_lshlrev_b32 v5, 8, v5'); a('v_add_u32 v4, v4, v5')
    a('v_and_b32 v5, 15, v1'); a('v_lshlrev_b32 v5, 4, v5'); a('v_add_u32 v4, v4, v5')
    for r in range(0,16,2): a(f'v_pk_mul_f32 {vr(ACC+r,2)}, {vr(ACC+r,2)}, s[20:21] op_sel_hi:[1,0]')
    O=16
    for j in range(3):
        for d in range(8): a(f'v_cvt_pk_bf16_f32 v{O+8*j+d}, v{ACC+16*j+2*d}, v{ACC+16*j+2*d+1}')
        if j<2:
            sb=14+2*j
            a(f'global_store_dwordx4 v2, {vr(O+8*j,4)}, s[{sb}:{sb+1}]'); a(f'global_store_dwordx4 v3, {vr(O+8*j+4,4)}, s[{sb}:{sb+1}]')
        else:
            a(f'global_store_dwordx4 v4, {vr(O+8*j,4)}, s[22:23]'); a(f'global_store_dwordx4 v4, {vr(O+8*j+4,4)}, s[22:23] offset:512')
    a.label('K1_END'); a('s_endpgm')
```

```python
from common import *
NEG=hx(-1e30)
def k2(a):
    a.label('k2_kernel')
    a('s_cmp_ge_u32 s2, 256'); a('s_cbranch_scc1 K2_END')
    ldarg(a,4,'ws')
    a('s_and_b32 s6, s2, 7'); a('s_lshr_b32 s7, s2, 3')
    a('s_lshr_b32 s8, s6, 1'); a('s_lshl_b32 s8, s8, 1'); a('s_and_b32 s9, s7, 1'); a('s_add_u32 s8, s8, s9')
    a('s_and_b32 s9, s6, 1'); a('s_lshl_b32 s9, s9, 4'); a('s_lshr_b32 s10, s7, 1'); a('s_add_u32 s9, s9, s10')
    a('v_readfirstlane_b32 s10, v0'); a('s_lshr_b32 s10, s10, 6')
    a('v_and_b32 v1, 63, v0'); a('v_lshlrev_b32 v2, 4, v1')
    a('s_lshl_b32 s11, s9, 6'); a('s_lshl_b32 s12, s8, 3'); a('s_add_u32 s11, s11, s12')
    a('s_lshl_b32 s13, s10, 1'); a('s_add_u32 s13, s13, s11'); a('s_lshl_b32 s13, s13, 10')
    a('s_add_u32 s14, s11, s10'); a('s_lshl_b32 s14, s14, 10')
    a('s_waitcnt lgkmcnt(0)'); a(';TS1')
    a(f's_add_u32 s15, s13, {WS_K-8192}'); a('s_add_u32 s16, s4, s15'); a('s_addc_u32 s17, s5, 0')
    a(f's_add_u32 s15, s13, {WS_V-8192}'); a('s_add_u32 s18, s4, s15'); a('s_addc_u32 s19, s5, 0')
    a(f's_add_u32 s15, s14, {WS_Q}'); a('s_add_u32 s20, s4, s15'); a('s_addc_u32 s21, s5, 0')
    KL=0; VL=16384; OL=32768
    a('s_lshl_b32 s22, s10, 11'); a('s_mov_b32 m0, s22')
    a('global_load_lds_dwordx4 v2, s[16:17]'); a('global_load_lds_dwordx4 v2, s[16:17] offset:1024')
    Q=4
    a(f'global_load_dwordx4 {vr(Q,4)}, v2, s[20:21]')
    a(f's_add_u32 m0, s22, {VL}')
    a('global_load_lds_dwordx4 v2, s[18:19]'); a('global_load_lds_dwordx4 v2, s[18:19] offset:1024')
    for i in range(4): a(f'v_mov_b32 v{8+i}, 0x3f803f80')
    a('v_lshlrev_b32 v3, 4, v0')
    a(f'ds_write_b128 v3, {vr(8,4)} offset:{OL}'); a(f'ds_write_b128 v3, {vr(8,4)} offset:{OL+8192}')
    S=96
    a('v_and_b32 v12, 31, v1'); a('v_lshrrev_b32 v13, 5, v1'); a('v_lshlrev_b32 v14, 2, v13'); a('v_sub_u32 v12, v12, v14')
    a(f'v_mov_b32 v14, {NEG}'); a('v_mov_b32 v15, 0')
    a('s_sub_u32 s23, 8, s10'); a('s_cmp_eq_u32 s8, 0'); a('s_cselect_b32 s23, s23, 0')
    for r in range(16):
        c=(r&3)+8*(r>>2)
        a(f'v_cmp_ge_i32 vcc, v12, {c}')
        a(f'v_cndmask_b32 v{S+128+r}, v14, v15, vcc'); a(f'v_cndmask_b32 v{S+r}, v15, v14, vcc')
    a('s_lshl_b32 s24, s10, 10'); a('v_add_u32 v3, s24, v2')
    a('v_and_b32 v8, 15, v1'); a('v_lshlrev_b32 v8, 4, v8'); a('v_lshlrev_b32 v9, 8, v13'); a('v_add_u32 v8, v8, v9')
    a(f's_add_u32 s24, s24, {VL}'); a('v_add_u32 v8, s24, v8'); a(f'v_mov_b32 v9, {OL}')
    a('v_and_b32 v10, 16, v1'); a('v_cmp_eq_u32 vcc, 0, v10'); a('v_cndmask_b32 v8, v9, v8, vcc')
    a('s_cmp_eq_u32 s23, 0'); a('s_cbranch_scc1 K2_NOINV')
    for i in range(8):
        a(f's_cmp_le_u32 s23, {i}'); a('s_cbranch_scc1 K2_NOINV')
        for r in range(16): a(f'v_mov_b32 v{S+16*i+r}, v14')
    a.label('K2_NOINV')
    a('s_waitcnt vmcnt(2) lgkmcnt(0)'); a('s_barrier'); a(';TS2')
    KB=16
    for i in range(9): a(f'ds_read_b128 {vr(KB+4*i,4)}, v3 offset:{i*1024}')
    for i in range(9):
        a(f's_waitcnt lgkmcnt({8-i})')
        d=vr(S+16*i,16)
        if i in (0,8):
            a(f'v_mfma_f32_32x32x16_bf16 {d}, {vr(KB+4*i,4)}, {vr(Q,4)}, {d}')
        else:
            a(f's_cmp_gt_u32 s23, {i}'); a(f's_cbranch_scc1 K2_I{i}')
            a(f'v_mfma_f32_32x32x16_bf16 {d}, {vr(KB+4*i,4)}, {vr(Q,4)}, 0'); a(f's_branch K2_J{i}')
            a.label(f'K2_I{i}')
            a(f'v_mfma_f32_32x32x16_bf16 {d}, {vr(KB+4*i,4)}, {vr(Q,4)}, {d}')
            a.label(f'K2_J{i}')
    a('s_waitcnt vmcnt(0)'); a('s_barrier'); a(';TS3')
    VB=16; NV=18
    for i in range(9):
        for m in range(2): a(f'ds_read_b128 {vr(VB+8*i+4*m,4)}, v8 offset:{i*1024+m*512}')
    M=88
    for k in range(4): a(f'v_max3_f32 v{M+k}, v{S+3*k}, v{S+3*k+1}, v{S+3*k+2}')
    idx=12; k=0
    while idx<144:
        a(f'v_max3_f32 v{M+k}, v{M+k}, v{S+idx}, v{S+idx+1}'); idx+=2; k=(k+1)&3
    a(f'v_max3_f32 v{M}, v{M}, v{M+1}, v{M+2}'); a(f'v_max_f32 v{M}, v{M}, v{M+3}')
    halfsum(a,M,M+1,'v_max_f32')
    a(f'v_sub_f32 v{M}, 0, v{M}')
    O=240
    a(';TS4')
    for i in range(9):
        b=S+16*i
        for r in range(0,16,2): a(f'v_pk_add_f32 {vr(b+r,2)}, {vr(b+r,2)}, {vr(M,2)} op_sel_hi:[1,0]')
        for r in range(16): a(f'v_exp_f32 v{b+r}, v{b+r}')
        for r in range(8): a(f'v_cvt_pk_bf16_f32 v{b+r}, v{b+2*r}, v{b+2*r+1}')
        if i==0: a('s_waitcnt lgkmcnt(0)')
        for m in range(2):
            cc='0' if (i==0 and m==0) else vr(O,16)
            a(f'v_mfma_f32_32x32x16_bf16 {vr(O,16)}, {vr(VB+8*i+4*m,4)}, {vr(b+4*m,4)}, {cc}')
    a(f'v_rcp_f32 v{M}, v{O+8}'); a(';TS5')
    for r in range(0,8,2): a(f'v_pk_mul_f32 {vr(O+r,2)}, {vr(O+r,2)}, {vr(M,2)} op_sel_hi:[1,0]')
    for d in range(4): a(f'v_cvt_pk_bf16_f32 v{4+d}, v{O+2*d}, v{O+2*d+1}')
    a('s_lshl_b32 s12, s8, 3'); a('s_add_u32 s12, s12, s10'); a('s_lshl_b32 s12, s12, 5'); a('s_add_u32 s12, s12, s9'); a('s_lshl_b32 s12, s12, 10')
    a(f's_add_u32 s12, s12, {WS_O}'); a('s_add_u32 s4, s4, s12'); a('s_addc_u32 s5, s5, 0')
    a(f'global_store_dwordx4 v2, {vr(4,4)}, s[4:5]')
    a.label('K2_END'); a('s_endpgm')
```

```python
from common import *
def k3(a):
    a.label('k3_kernel')
    a('s_cmp_ge_u32 s2, 256'); a('s_cbranch_scc1 K3_END')
    ldarg(a,4,'ws'); ldarg(a,26,'x')
    a('s_and_b32 s6, s2, 7'); a('s_lshr_b32 s7, s2, 3')
    a('s_lshr_b32 s8, s6, 1'); a('s_lshl_b32 s8, s8, 3'); a('s_and_b32 s9, s7, 7'); a('s_add_u32 s8, s8, s9')
    a('s_and_b32 s9, s6, 1'); a('s_lshl_b32 s9, s9, 2'); a('s_lshr_b32 s10, s7, 3'); a('s_add_u32 s9, s9, s10')
    a('v_readfirstlane_b32 s10, v0'); a('s_lshr_b32 s10, s10, 6')
    a('s_lshr_b32 s11, s10, 1'); a('s_and_b32 s12, s10, 1')
    a('v_and_b32 v1, 63, v0'); a('v_lshlrev_b32 v2, 4, v1')
    a('s_lshl_b32 s13, s8, 1'); a('s_add_u32 s13, s13, s12'); a('s_lshl_b32 s13, s13, 15'); a(f's_add_u32 s13, s13, {WS_O}')
    a('s_lshl_b32 s14, s9, 1'); a('s_add_u32 s14, s14, s12'); a('s_lshl_b32 s14, s14, 15'); a(f's_add_u32 s14, s14, {WS_WO}')
    a('s_cmp_eq_u32 s11, 0'); a('s_cselect_b32 s13, s13, s14')
    a('s_lshl_b32 s15, s10, 15')
    a('s_waitcnt lgkmcnt(0)'); a(';TS1')
    a('s_add_u32 s16, s4, s13'); a('s_addc_u32 s17, s5, 0')
    for c in range(8):
        a(f's_add_u32 m0, s15, {c*4096}')
        for i in range(4): a(f'global_load_lds_dwordx4 v2, s[16:17] offset:{i*1024}')
        if c<7: a('s_add_u32 s16, s16, 4096'); a('s_addc_u32 s17, s17, 0')
    a('v_and_b32 v3, 31, v1'); a('v_lshrrev_b32 v4, 5, v1')
    a('s_lshl_b32 s18, s8, 6'); a('s_lshl_b32 s19, s11, 5'); a('s_add_u32 s18, s18, s19'); a('v_add_u32 v5, s18, v3')
    a('s_lshl_b32 s18, s9, 6'); a('s_lshl_b32 s19, s12, 5'); a('s_add_u32 s18, s18, s19'); a('v_lshlrev_b32 v6, 4, v4'); a('v_add_u32 v6, s18, v6')
    a('v_lshlrev_b32 v7, 10, v5'); a('v_lshlrev_b32 v8, 1, v6'); a('v_add_u32 v7, v7, v8')
    a('v_lshlrev_b32 v8, 2, v6')
    X=16; GA=24; U=40
    addc(a,20,4,WS_MOD); addc(a,22,4,WS_MOD+8192)
    a(f'global_load_dwordx4 {vr(X,4)}, v7, s[26:27]'); a(f'global_load_dwordx4 {vr(X+4,4)}, v7, s[26:27] offset:16')
    for i in range(4): a(f'global_load_dwordx4 {vr(GA+4*i,4)}, v8, s[20:21] offset:{16*i}')
    for i in range(4): a(f'global_load_dwordx4 {vr(U+4*i,4)}, v8, s[22:23] offset:{16*i}')
    E=10
    a('s_lshl_b32 s18, s11, 15'); a('v_add_u32 v9, s18, v2')
    a('s_lshl_b32 s18, s12, 15'); a('s_add_u32 s18, s18, 65536'); a('v_add_u32 v10, s18, v2')
    B=64; ACC=96; NB=4
    def rd(k):
        a(f'ds_read_b128 {vr(B+8*(k%NB),4)}, v10 offset:{k*1024}'); a(f'ds_read_b128 {vr(B+8*(k%NB)+4,4)}, v9 offset:{k*1024}')
    for c in range(4):
        a(f's_waitcnt vmcnt({24-8*c+E})'); a('s_barrier')
        if c==0: a(';TS2')
        if c==3: a(';TS3')
        for i in range(3): rd(8*c+i)
        for i in range(8):
            k=8*c+i
            if i+3<8: rd(k+3)
            a(f's_waitcnt lgkmcnt({2*min(7-i,3)})')
            cc='0' if k==0 else vr(ACC,16)
            a(f'v_mfma_f32_32x32x16_bf16 {vr(ACC,16)}, {vr(B+8*(k%NB),4)}, {vr(B+8*(k%NB)+4,4)}, {cc}')
    a('s_waitcnt vmcnt(0)'); a(';TS4')
    T=64
    XF=80
    for d in range(8): unpack(a,XF+2*d,XF+2*d+1,X+d)
    for d in range(8): a(f'v_cvt_pk_bf16_f32 v{T+d}, v{ACC+2*d}, v{ACC+2*d+1}')
    for d in range(8): unpack(a,ACC+2*d,ACC+2*d+1,T+d)
    for d in range(8): a(f'v_pk_mul_f32 {vr(ACC+2*d,2)}, {vr(ACC+2*d,2)}, {vr(GA+2*d,2)}')
    for d in range(8): a(f'v_cvt_pk_bf16_f32 v{T+d}, v{ACC+2*d}, v{ACC+2*d+1}')
    for d in range(8): unpack(a,ACC+2*d,ACC+2*d+1,T+d)
    for d in range(8): a(f'v_pk_add_f32 {vr(ACC+2*d,2)}, {vr(ACC+2*d,2)}, {vr(XF+2*d,2)}')
    for d in range(8): a(f'v_cvt_pk_bf16_f32 v{T+d}, v{ACC+2*d}, v{ACC+2*d+1}')
    addc(a,20,4,WS_X1)
    a(f'global_store_dwordx4 v7, {vr(T,4)}, s[20:21]'); a(f'global_store_dwordx4 v7, {vr(T+4,4)}, s[20:21] offset:16')
    for d in range(8): unpack(a,ACC+2*d,ACC+2*d+1,T+d)
    S1=XF; S2=XF+2; S3=XF+4
    a(f'v_pk_add_f32 {vr(S1,2)}, {vr(ACC,2)}, {vr(ACC+2,2)}'); a(f'v_pk_mul_f32 {vr(S2,2)}, {vr(ACC,2)}, {vr(ACC,2)}'); a(f'v_pk_mul_f32 {vr(S3,2)}, {vr(ACC,2)}, {vr(U,2)}')
    for d in range(1,8):
        if d>1: a(f'v_pk_add_f32 {vr(S1,2)}, {vr(S1,2)}, {vr(ACC+2*d,2)}')
        a(f'v_pk_fma_f32 {vr(S2,2)}, {vr(ACC+2*d,2)}, {vr(ACC+2*d,2)}, {vr(S2,2)}')
        a(f'v_pk_fma_f32 {vr(S3,2)}, {vr(ACC+2*d,2)}, {vr(U+2*d,2)}, {vr(S3,2)}')
    for s in (S1,S2,S3):
        a(f'v_add_f32 v{s}, v{s}, v{s+1}'); halfsum(a,s,s+1)
    a('s_mul_i32 s18, s12, 768'); a('s_lshl_b32 s19, s11, 7'); a('s_add_u32 s18, s18, s19'); a('s_add_u32 s18, s18, 131072')
    a('v_lshlrev_b32 v3, 2, v3'); a('v_add_u32 v3, s18, v3')
    a(f'ds_write_b32 v3, v{S1}'); a(f'ds_write_b32 v3, v{S2} offset:256'); a(f'ds_write_b32 v3, v{S3} offset:512')
    a('s_lshl_b32 s18, s10, 8'); a('s_add_u32 s18, s18, 131072'); a('v_lshlrev_b32 v4, 2, v1'); a('v_add_u32 v5, s18, v4')
    a('s_lshl_b32 s18, s10, 13'); a('s_lshl_b32 s19, s8, 8'); a('s_add_u32 s18, s18, s19'); a(f's_add_u32 s18, s18, {WS_ST}')
    a('s_add_u32 s4, s4, s18'); a('s_addc_u32 s5, s5, 0')
    a('s_waitcnt lgkmcnt(0)'); a('s_barrier')
    a('s_cmp_ge_u32 s10, 3'); a('s_cbranch_scc1 K3_END')
    a('ds_read_b32 v6, v5'); a('ds_read_b32 v7, v5 offset:768')
    a('s_waitcnt lgkmcnt(0)')
    a('v_add_f32 v6, v6, v7')
    a('global_atomic_add_f32 v4, v6, s[4:5]')
    a.label('K3_END'); a('s_endpgm')
```

```python
from common import *
NMOE=86
def rowstats(a,s1,s2,mean,rstd,t):
    a(f'v_mul_f32 v{mean}, {hx(1.0/512)}, v{s1}')
    a(f'v_mul_f32 v{t}, v{mean}, v{mean}'); a(f'v_mul_f32 v{rstd}, {hx(1.0/512)}, v{s2}'); a(f'v_sub_f32 v{rstd}, v{rstd}, v{t}')
    a(f'v_max_f32 v{rstd}, 0, v{rstd}'); a(f'v_add_f32 v{rstd}, {hx(1e-5)}, v{rstd}'); a(f'v_rsq_f32 v{rstd}, v{rstd}')
def h2calc(a,F,n,mean,rstd,CB,SB,T):
    for d in range(0,n,2): a(f'v_pk_add_f32 {vr(F+d,2)}, {vr(F+d,2)}, {vr(mean,2)} op_sel_hi:[1,0] neg_lo:[0,1] neg_hi:[0,1]')
    for d in range(0,n,2): a(f'v_pk_mul_f32 {vr(F+d,2)}, {vr(F+d,2)}, {vr(rstd,2)} op_sel_hi:[1,0]')
    def rnd():
        for d in range(0,n,2): a(f'v_cvt_pk_bf16_f32 v{T+d//2}, v{F+d}, v{F+d+1}')
        for d in range(0,n,2): unpack(a,F+d,F+d+1,T+d//2)
    rnd()
    for d in range(0,n,2): a(f'v_pk_mul_f32 {vr(F+d,2)}, {vr(F+d,2)}, {vr(CB+d,2)}')
    rnd()
    for d in range(0,n,2): a(f'v_pk_add_f32 {vr(F+d,2)}, {vr(F+d,2)}, {vr(SB+d,2)}')
    rnd()
def top2step(a,k1,k2,b1,b2,lo):
    a(f'v_min_u32 v{lo}, v{k1}, v{b1}'); a(f'v_max_u32 v{k1}, v{k1}, v{b1}'); a(f'v_max3_u32 v{k2}, v{lo}, v{k2}, v{b2}')
def k4(a):
    a.label('k4_kernel')
    a(f's_cmp_ge_u32 s2, {NMOE+128}'); a('s_cbranch_scc1 K4_END')
    ldarg(a,4,'ws')
    a(f's_cmp_ge_u32 s2, {NMOE}'); a('s_cbranch_scc1 K4_OUT')
    ldarg(a,6,'wg'); ldarg(a,8,'wu'); ldarg(a,10,'wr')
    a('v_lshrrev_b32 v1, 2, v0'); a('v_mul_u32_u24 v1, 2752, v1'); a('v_and_b32 v2, 1, v0'); a('v_lshlrev_b32 v2, 4, v2'); a('v_add_u32 v1, v1, v2')
    a('s_lshl_b32 s12, s2, 5'); a('v_add_u32 v1, s12, v1')
    a('v_lshlrev_b32 v3, 5, v0')
    a('v_lshlrev_b32 v4, 3, v0')
    a('v_lshlrev_b32 v5, 2, v0')
    a('s_waitcnt lgkmcnt(0)'); a(';TS1')
    addc(a,14,4,WS_ST); addc(a,16,4,WS_ST+8192); addc(a,18,4,WS_ST+16384); addc(a,20,4,WS_MOD)
    ST=16
    for s in range(3):
        a(f'global_load_dwordx4 {vr(ST+8*s,4)}, v3, s[{14+2*s}:{15+2*s}]'); a(f'global_load_dwordx4 {vr(ST+8*s+4,4)}, v3, s[{14+2*s}:{15+2*s}] offset:16')
    a('global_load_dwordx2 v[40:41], v4, s[20:21] offset:2048')
    a('v_add_u32 v6, 4096, v4')
    a('global_load_dwordx2 v[42:43], v6, s[20:21]')
    a('v_add_u32 v6, 8192, v4')
    a('global_load_dwordx2 v[44:45], v6, s[20:21]')
    a('global_load_dword v46, v5, s[10:11]')
    a('v_and_b32 v2, 2, v0'); a('v_cmp_eq_u32 vcc, 0, v2')
    a('v_mov_b32 v8, s8'); a('v_mov_b32 v9, s9'); a('v_mov_b32 v10, s6'); a('v_mov_b32 v11, s7')
    a('v_cndmask_b32 v8, v8, v10, vcc'); a('v_cndmask_b32 v9, v9, v11, vcc')
    a('v_add_co_u32 v8, vcc, v8, v1'); a('v_addc_co_u32 v9, vcc, 0, v9, vcc')
    W=64
    for i in range(8):
        a(f'global_load_dwordx4 {vr(W+4*i,4)}, v[8:9], off')
        if i<7: a(f'v_add_co_u32 v8, vcc, {64*2752}, v8'); a('v_addc_co_u32 v9, vcc, 0, v9, vcc')
    a('s_waitcnt vmcnt(8)'); a(';TS2')
    unpack(a,47,48,46)
    a('v_mul_f32 v47, v47, v40'); a('v_fmac_f32 v47, v48, v41')
    a('v_add_f32 v48, v44, v45')
    for v in (47,48):
        for c in ('quad_perm:[1,0,3,2]','quad_perm:[2,3,0,1]','row_half_mirror','row_mirror'): dppadd(a,v,c)
        a(f'v_mov_b32 v49, v{v}'); a(f'v_permlane16_swap_b32 v{v}, v49'); a(f'v_add_f32 v{v}, v{v}, v49')
        halfsum(a,v,49)
    a('v_lshrrev_b32 v12, 6, v0'); a('v_lshlrev_b32 v13, 3, v12')
    a('ds_write_b64 v13, v[47:48]' if False else 'v_mov_b32 v50, v47'); a('v_mov_b32 v51, v48')
    a('ds_write_b64 v13, v[50:51]')
    a('ds_write_b64 v4, v[40:41] offset:1024'); a('ds_write_b64 v4, v[42:43] offset:3072')
    a('v_mov_b32 v13, 0')
    a('s_waitcnt lgkmcnt(0)'); a('s_barrier')
    a('ds_read_b128 v[52:55], v13'); a('ds_read_b128 v[56:59], v13 offset:16')
    a('s_waitcnt lgkmcnt(0)')
    a('v_add_f32 v52, v52, v54'); a('v_add_f32 v56, v56, v58'); a('v_add_f32 v52, v52, v56')
    a('v_add_f32 v53, v53, v55'); a('v_add_f32 v57, v57, v59'); a('v_add_f32 v53, v53, v57')
    K1,K2=54,55
    a(f'v_mov_b32 v{K1}, 0'); a(f'v_mov_b32 v{K2}, 0')
    a('v_lshlrev_b32 v12, 3, v0'); a('v_sub_u32 v12, 0x7ff, v12')
    for i in range(8):
        m,rs,t=56,57,58
        rowstats(a,ST+i,ST+8+i,m,rs,t)
        a(f'v_fma_f32 v{t}, -v{m}, v53, v{ST+16+i}'); a(f'v_fma_f32 v{t}, v{rs}, v{t}, v52')
        a(f'v_cvt_pk_bf16_f32 v{t}, v{t}, v{t}'); a(f'v_and_b32 v{t}, 0xffff, v{t}')
        a(f'v_bfe_i32 v59, v{t}, 15, 1'); a('v_or_b32 v59, 0x8000, v59'); a(f'v_xor_b32 v{t}, v{t}, v59'); a(f'v_lshlrev_b32 v{t}, 16, v{t}')
        a(f'v_subrev_u32 v59, {i}, v12'); a(f'v_or_b32 v{t}, v{t}, v59')
        a(f'v_med3_u32 v{K2}, v{K1}, v{K2}, v{t}'); a(f'v_max_u32 v{K1}, v{K1}, v{t}')
    for c in ('quad_perm:[1,0,3,2]','quad_perm:[2,3,0,1]','row_half_mirror','row_mirror'):
        a(f'v_mov_b32_dpp v56, v{K1} {c} row_mask:0xf bank_mask:0xf'); a(f'v_mov_b32_dpp v57, v{K2} {c} row_mask:0xf bank_mask:0xf')
        top2step(a,K1,K2,56,57,58)
    for sw in ('v_permlane16_swap_b32','v_permlane32_swap_b32'):
        a(f'v_mov_b32 v56, v{K1}'); a(f'v_mov_b32 v57, v{K2}'); a(f'{sw} v{K1}, v56'); a(f'{sw} v{K2}, v57')
        top2step(a,K1,K2,56,57,58)
    a('v_lshrrev_b32 v12, 6, v0'); a('v_lshlrev_b32 v13, 3, v12')
    a(f'ds_write_b64 v13, v[{K1}:{K2}] offset:64')
    a('v_mov_b32 v13, 0')
    a('s_waitcnt lgkmcnt(0)'); a('s_barrier')
    a('ds_read_b128 v[56:59], v13 offset:64'); a('ds_read_b128 v[60:63], v13 offset:80')
    a('s_waitcnt lgkmcnt(0)')
    a(';TS3'); top2step(a,56,57,58,59,12); top2step(a,60,61,62,63,12); top2step(a,56,57,60,61,12)
    a('v_readfirstlane_b32 s22, v56'); a('v_readfirstlane_b32 s23, v57'); a('v_readfirstlane_b32 s24, v0')
    a('s_lshr_b32 s24, s24, 6')
    a('s_and_b32 s25, s22, 0x7ff'); a('s_sub_u32 s25, 0x7ff, s25'); a('s_and_b32 s26, s23, 0x7ff'); a('s_sub_u32 s26, 0x7ff, s26')
    a('s_cmp_ge_u32 s24, 2'); a('s_cbranch_scc1 K4_H2DONE')
    a('s_cmp_eq_u32 s24, 0'); a('s_cselect_b32 s27, s25, s26'); a('s_cselect_b32 s28, s22, s23')
    a('v_and_b32 v12, 63, v0'); a('v_lshlrev_b32 v13, 4, v12')
    a('s_lshl_b32 s29, s27, 10'); a(f's_add_u32 s29, s29, {WS_X1}'); a('s_add_u32 s30, s4, s29'); a('s_addc_u32 s31, s5, 0')
    a('global_load_dwordx4 v[16:19], v13, s[30:31]')
    a('s_lshl_b32 s29, s27, 2'); a('v_mov_b32 v14, s29')
    a('global_load_dword v20, v14, s[14:15]'); a('global_load_dword v21, v14, s[16:17]')
    a('v_lshlrev_b32 v14, 5, v12')
    a('ds_read_b128 v[32:35], v14 offset:1024'); a('ds_read_b128 v[36:39], v14 offset:1040')
    a('ds_read_b128 v[40:43], v14 offset:3072'); a('ds_read_b128 v[44:47], v14 offset:3088')
    a('s_waitcnt vmcnt(0) lgkmcnt(0)')
    rowstats(a,20,21,22,24,23)
    for d in range(4): unpack(a,48+2*d,49+2*d,16+d)
    h2calc(a,48,8,22,24,40,32,26)
    a('s_lshl_b32 s29, s24, 2'); a('v_lshlrev_b32 v15, 6, v12'); a('v_add_u32 v15, s29, v15')
    for d in range(8): a(f'ds_write_b32 v15, v{48+d} offset:{8192+8*d}')
    a('s_cmp_lg_u32 s2, 0'); a('s_cbranch_scc1 K4_H2DONE')
    a('s_lshl_b32 s29, s24, 11'); a(f's_add_u32 s29, s29, {WS_SEL+64}'); a('s_add_u32 s30, s4, s29'); a('s_addc_u32 s31, s5, 0')
    a('global_store_dwordx4 v14, v[48:51], s[30:31]'); a('global_store_dwordx4 v14, v[52:55], s[30:31] offset:16')
    a('s_lshr_b32 s28, s28, 16'); a('s_and_b32 s29, s28, 0x8000'); a('s_cmp_lg_u32 s29, 0'); a('s_mov_b32 s33, 0xffff'); a('s_cselect_b32 s29, 0x8000, s33'); a('s_xor_b32 s28, s28, s29'); a('s_lshl_b32 s28, s28, 16')
    a('v_mov_b32 v16, s28'); a(f'v_mul_f32 v16, {hx(-LOG2E)}, v16'); a('v_exp_f32 v16, v16'); a('v_add_f32 v16, 1.0, v16'); a('v_rcp_f32 v16, v16'); bf16r(a,16,16)
    a('v_mov_b32 v17, v16'); a('v_mov_b32 v16, s27')
    a('s_lshl_b32 s29, s24, 3'); a('v_mov_b32 v18, s29'); addc(a,30,4,WS_SEL)
    a('global_store_dwordx2 v18, v[16:17], s[30:31]')
    a.label('K4_H2DONE')
    a('s_waitcnt lgkmcnt(0)'); a('s_barrier'); a(';TS4')
    a('v_lshrrev_b32 v12, 2, v0'); a('v_lshlrev_b32 v12, 3, v12')
    H=16
    for i in range(8): a(f'ds_read_b64 {vr(H+2*i,2)}, v12 offset:{8192+512*i}')
    ACC=32
    for i in range(16): a(f'v_mov_b32 v{ACC+i}, 0')
    a('s_waitcnt vmcnt(0) lgkmcnt(0)'); a(';TS5')
    for i in range(8):
        for d in range(4):
            t=48+2*d
            unpack(a,t,t+1,W+4*i+d)
            a(f'v_pk_fma_f32 {vr(ACC+4*d,2)}, {vr(t,2)}, {vr(H+2*i,2)}, {vr(ACC+4*d,2)} op_sel_hi:[0,1,1]')
            a(f'v_pk_fma_f32 {vr(ACC+4*d+2,2)}, {vr(t,2)}, {vr(H+2*i,2)}, {vr(ACC+4*d+2,2)} op_sel:[1,0,0] op_sel_hi:[1,1,1]')
    for c in ('row_ror:4','row_ror:8'):
        for i in range(16): dppadd(a,ACC+i,c)
    a('v_lshrrev_b32 v12, 4, v0'); a('v_lshlrev_b32 v12, 8, v12'); a('v_and_b32 v13, 3, v0'); a('v_lshlrev_b32 v13, 6, v13'); a('v_add_u32 v12, v12, v13')
    a('s_mov_b32 s16, 0x000f000f'); a('s_mov_b32 s17, 0x000f000f'); a('s_mov_b64 exec, s[16:17]')
    for i in range(4): a(f'ds_write_b128 v12, {vr(ACC+4*i,4)} offset:{16384+16*i}')
    a('s_mov_b64 exec, -1')
    a('s_waitcnt lgkmcnt(0)'); a('s_barrier')
    a('s_cmp_ge_u32 s24, 1'); a('s_cbranch_scc1 K4_END')
    a('v_lshlrev_b32 v12, 2, v0')
    for i in range(16): a(f'ds_read_b32 v{16+i}, v12 offset:{16384+256*i}')
    a('s_waitcnt lgkmcnt(0)')
    for st in (8,4,2,1):
        for i in range(st): a(f'v_add_f32 v{16+i}, v{16+i}, v{16+i+st}')
    bf16r(a,16,16)
    a('v_mov_b32 v17, v16'); a('v_permlane32_swap_b32 v16, v17')
    a(f's_mov_b32 s20, {hx(-LOG2E)}')
    silu(a,18,16,19,20); bf16r(a,18,18); a('v_mul_f32 v18, v18, v17'); bf16r(a,18,18)
    a('s_lshl_b32 s12, s2, 7'); a(f's_add_u32 s12, s12, {WS_ACT}'); a('s_add_u32 s4, s4, s12'); a('s_addc_u32 s5, s5, 0')
    a('s_mov_b32 exec_hi, 0')
    a('global_store_dword v12, v18, s[4:5]')
    a('s_endpgm')
    a.label('K4_OUT')
    ldarg(a,6,'out')
    a(f's_sub_u32 s12, s2, {NMOE}')
    a('v_and_b32 v1, 63, v0'); a('v_lshrrev_b32 v2, 6, v0')
    a('s_lshl_b32 s13, s12, 4'); a('v_add_u32 v2, s13, v2')
    a('v_lshlrev_b32 v3, 10, v2'); a('v_lshlrev_b32 v4, 4, v1'); a('v_add_u32 v3, v3, v4'); a('v_add_u32 v7, 4096, v3')
    a('v_lshlrev_b32 v5, 2, v2'); a('v_lshlrev_b32 v6, 5, v1')
    a('s_waitcnt lgkmcnt(0)')
    addc(a,8,4,WS_X1); addc(a,14,4,WS_ST); addc(a,16,4,WS_ST+8192); addc(a,20,4,WS_MOD+2048); addc(a,22,4,WS_MOD+6144)
    X=16
    a('v_add_u32 v8, 0x2000, v3'); a('v_add_u32 v9, 0x3000, v3')
    offs=[3,7,8,9]
    for i in range(4): a(f'global_load_dwordx4 {vr(X+4*i,4)}, v{offs[i]}, s[8:9]')
    for i in range(4):
        a(f'global_load_dword v{32+i}, v5, s[14:15] offset:{16*i}'); a(f'global_load_dword v{36+i}, v5, s[16:17] offset:{16*i}')
    SB=40; CB=48; GB=56
    a(f'global_load_dwordx4 {vr(SB,4)}, v6, s[20:21]'); a(f'global_load_dwordx4 {vr(SB+4,4)}, v6, s[20:21] offset:16')
    a(f'global_load_dwordx4 {vr(CB,4)}, v6, s[20:21] offset:2048'); a(f'global_load_dwordx4 {vr(CB+4,4)}, v6, s[20:21] offset:2064')
    a(f'global_load_dwordx4 {vr(GB,4)}, v6, s[22:23]'); a(f'global_load_dwordx4 {vr(GB+4,4)}, v6, s[22:23] offset:16')
    a(';TS1'); a('s_waitcnt vmcnt(0)'); a(';TS2')
    for i in range(4):
        F=64; XF=72; T=80
        rowstats(a,32+i,36+i,84,86,85)
        for d in range(4): unpack(a,F+2*d,F+2*d+1,X+4*i+d)
        for d in range(8): a(f'v_mov_b32 v{XF+d}, v{F+d}')
        h2calc(a,F,8,84,86,CB,SB,T)
        for d in range(0,8,2): a(f'v_pk_mul_f32 {vr(F+d,2)}, {vr(F+d,2)}, {vr(GB+d,2)}')
        for d in range(4): a(f'v_cvt_pk_bf16_f32 v{T+d}, v{F+2*d}, v{F+2*d+1}')
        for d in range(4): unpack(a,F+2*d,F+2*d+1,T+d)
        for d in range(0,8,2): a(f'v_pk_add_f32 {vr(F+d,2)}, {vr(F+d,2)}, {vr(XF+d,2)}')
        for d in range(4): a(f'v_cvt_pk_bf16_f32 v{88+4*i+d}, v{F+2*d}, v{F+2*d+1}')
        a(f'global_store_dwordx4 v{offs[i]}, {vr(88+4*i,4)}, s[6:7]')
    a.label('K4_END'); a('s_endpgm')

def k5(a):
    a.label('k5_kernel')
    a('s_cmp_ge_u32 s2, 32'); a('s_cbranch_scc1 K5_END')
    ldarg(a,4,'ws'); ldarg(a,6,'wd'); ldarg(a,16,'out')
    a('v_lshrrev_b32 v1, 1, v0'); a('v_and_b32 v2, 1, v0')
    a('v_lshlrev_b32 v3, 10, v1'); a('v_lshlrev_b32 v4, 4, v2'); a('v_add_u32 v3, v3, v4'); a('s_lshl_b32 s12, s2, 5'); a('v_add_u32 v3, s12, v3')
    a('v_lshlrev_b32 v5, 3, v1')
    a('s_waitcnt lgkmcnt(0)')
    a(';TS1'); a('s_mov_b32 s8, s6'); a('s_mov_b32 s9, s7'); a(f's_mov_b32 s10, {1376*1024}'); a('s_mov_b32 s11, 0x00020000')
    a(f's_add_u32 s20, s4, {WS_ACT}'); a('s_addc_u32 s21, s5, 0'); a(f's_mov_b32 s22, {1376*8}'); a('s_mov_b32 s23, 0x00020000')
    W=16; H=48
    for i in range(6):
        a(f'buffer_load_dwordx4 {vr(W+4*i,4)}, v3, s[8:11], 0 offen')
        if i<5: a('v_add_u32 v3, 0x40000, v3')
    for i in range(6): a(f'buffer_load_dwordx2 {vr(H+2*i,2)}, v5, s[20:23], 0 offen offset:{0}'); a('v_add_u32 v5, 2048, v5')
    addc(a,24,4,WS_SEL)
    a('v_and_b32 v6, 31, v0'); a('v_lshrrev_b32 v7, 4, v6'); a('v_and_b32 v8, 15, v0'); a('s_lshl_b32 s13, s2, 4'); a('v_add_u32 v8, s13, v8')
    a('v_lshlrev_b32 v9, 3, v7')
    a('global_load_dwordx2 v[10:11], v9, s[24:25]')
    a('v_lshlrev_b32 v9, 11, v7'); a('v_lshlrev_b32 v12, 2, v8'); a('v_add_u32 v9, v9, v12')
    a('global_load_dword v13, v9, s[24:25] offset:64')
    addc(a,26,4,WS_MOD+6144)
    a('global_load_dword v14, v12, s[26:27]')
    ACC=64
    for i in range(16): a(f'v_mov_b32 v{ACC+i}, 0')
    a('s_waitcnt vmcnt(2)'); a(';TS2')
    a('v_lshlrev_b32 v9, 10, v10'); a('v_lshlrev_b32 v12, 1, v8'); a('v_add_u32 v9, v9, v12')
    addc(a,28,4,WS_X1)
    a('global_load_ushort v15, v9, s[28:29]')
    for i in range(6):
        for d in range(4):
            t=80+2*d
            unpack(a,t,t+1,W+4*i+d)
            a(f'v_pk_fma_f32 {vr(ACC+4*d,2)}, {vr(t,2)}, {vr(H+2*i,2)}, {vr(ACC+4*d,2)} op_sel_hi:[0,1,1]')
            a(f'v_pk_fma_f32 {vr(ACC+4*d+2,2)}, {vr(t,2)}, {vr(H+2*i,2)}, {vr(ACC+4*d+2,2)} op_sel:[1,0,0] op_sel_hi:[1,1,1]')
    for c in ('quad_perm:[2,3,0,1]','row_ror:4','row_ror:8'):
        for i in range(16): dppadd(a,ACC+i,c)
    a('v_lshrrev_b32 v12, 4, v0'); a('v_lshlrev_b32 v12, 7, v12'); a('v_lshlrev_b32 v2, 6, v2'); a('v_add_u32 v12, v12, v2')
    a('s_mov_b32 s14, 0x00030003'); a('s_mov_b32 s15, 0x00030003'); a('s_mov_b64 exec, s[14:15]')
    for i in range(4): a(f'ds_write_b128 v12, {vr(ACC+4*i,4)} offset:{16*i}')
    a('s_mov_b64 exec, -1')
    a('s_waitcnt lgkmcnt(0)'); a('s_barrier')
    a(';TS3'); a('v_readfirstlane_b32 s14, v0'); a('s_cmp_ge_u32 s14, 64'); a('s_cbranch_scc1 K5_END')
    a('v_and_b32 v12, 15, v0'); a('v_lshrrev_b32 v2, 3, v12'); a('v_lshlrev_b32 v2, 6, v2'); a('v_and_b32 v12, 7, v12'); a('v_lshlrev_b32 v12, 3, v12'); a('v_add_u32 v12, v12, v2')
    a('v_lshlrev_b32 v2, 2, v7'); a('v_add_u32 v12, v12, v2'); a('v_lshrrev_b32 v2, 5, v0'); a('v_lshlrev_b32 v2, 11, v2'); a('v_add_u32 v12, v12, v2')
    for i in range(16): a(f'ds_read_b32 v{16+i}, v12 offset:{128*i}')
    a('s_waitcnt lgkmcnt(0)')
    for st in (8,4,2,1):
        for i in range(st): a(f'v_add_f32 v{16+i}, v{16+i}, v{16+i+st}')
    halfsum(a,16,17)
    a('s_waitcnt vmcnt(0)')
    bf16r(a,16,16); a('v_mul_f32 v16, v16, v11'); bf16r(a,16,16)
    a('v_add_f32 v16, v16, v13'); bf16r(a,16,16); a('v_mul_f32 v16, v16, v14'); bf16r(a,16,16)
    a('v_lshlrev_b32 v15, 16, v15'); a('v_add_f32 v16, v16, v15'); a('v_cvt_pk_bf16_f32 v16, v16, v16')
    a('s_mov_b32 exec_hi, 0')
    a('global_store_short v9, v16, s[16:17]')
    a.label('K5_END'); a('s_endpgm')
```

```python
import sys, importlib
from common import *
import k0,k1,k2,k3,k4
KS=[('k0_kernel',k0.k0,k0.NK0,256,16384,160),('k1_kernel',k1.k1,256,256,k1.K1_LDS,512),('k2_kernel',k2.k2,256,512,131072+2048,256),
    ('k4_kernel',k4.k4,k4.NMOE+128,256,24576,128)]
def build(path,prof=False):
    hdr=open('cdna_kernels/%s.s.ref'%NAME).read().split('\n')
    top=[l for l in hdr if l.startswith(';') and '@launch' not in l and 'Override launch' not in l and 'grid=ceil' not in l]
    out=top[:]
    for n,f,g,b,l,v in KS: out.append(f'; @launch kernel={n} grid=({g},1,1) block=({b},1,1) lds={l}')
    out+=['.amdgcn_target "amdgcn-amd-amdhsa--gfx950"','.text']
    for n,f,g,b,l,v in KS:
        a=Asm(); f(a)
        L=a.lines
        if prof:
            ki=[k[0] for k in KS].index(n)
            L2=[L[0],'s_memrealtime s[76:77]','v_readfirstlane_b32 s91, v0','s_lshr_b32 s91, s91, 6']+[f's_mov_b32 s{78+2*q}, 0' for q in range(6)]
            for l in L[1:]:
                if l=='s_endpgm': L2.append(f's_branch FIN{ki}')
                elif l.startswith(';TS'): q=int(l[3:]); L2.append(f's_memrealtime s[{76+2*q}:{77+2*q}]')
                else: L2.append(l)
            L=L2
            L+=[f'FIN{ki}:','s_waitcnt vmcnt(0) lgkmcnt(0)','s_memrealtime s[90-0:91-0]'.replace('90-0','94').replace('91-0','95').replace('s[94:95]','s[92:93]')]
            L+=['s_load_dwordx2 s[94:95], s[0:1], 96','s_mov_b64 exec, 1','s_waitcnt lgkmcnt(0)',
                's_lshl_b32 s90, s2, 4','s_add_u32 s90, s90, s91','s_lshl_b32 s90, s90, 5',f's_add_u32 s90, s90, {0x1000000+ki*0x50000}','s_add_u32 s94, s94, s90','s_addc_u32 s95, s95, 0',
                'v_mov_b32 v1, 0']+[f'v_mov_b32 v{2+q}, s{76+2*q}' for q in range(7)]+['v_mov_b32 v9, s92','global_store_dwordx4 v1, v[2:5], s[94:95]','global_store_dwordx4 v1, v[6:9], s[94:95] offset:16','s_endpgm']
        else:
            L=[l for l in L if not l.startswith(';TS')]
        import os
        fl=os.environ.get('STFLAG','')
        if fl: L=[(l+' '+fl if l.startswith('global_store') else l) for l in L]
        lines=fix_hazards(L)
        out+=[f'.globl {n}','.p2align 8',f'.type {n},@function']+lines
    out+=['.section .rodata,"a"']
    for n,f,g,b,l,v in KS:
        out+=['.p2align 6',f'.amdhsa_kernel {n}',f'  .amdhsa_next_free_vgpr {v}','  .amdhsa_next_free_sgpr 102',f'  .amdhsa_accum_offset {min(v,256)}',
              '  .amdhsa_group_segment_fixed_size 0','  .amdhsa_kernarg_size 104','  .amdhsa_user_sgpr_count 2','  .amdhsa_user_sgpr_kernarg_segment_ptr 1',
              '  .amdhsa_system_sgpr_workgroup_id_x 1','.end_amdhsa_kernel']
    open(path,'w').write('\n'.join(out)+'\n')
if __name__=='__main__':
    build(sys.argv[1] if len(sys.argv)>1 else 'cdna_kernels/%s.s'%NAME, len(sys.argv)>2)
```

```python
from common import *
NK0=534
def wavesum(a,regs,t):
    for c in ('quad_perm:[1,0,3,2]','quad_perm:[2,3,0,1]','row_half_mirror','row_mirror'):
        for r in regs: dppadd(a,r,c)
    for sw in ('v_permlane16_swap_b32','v_permlane32_swap_b32'):
        for r,q in zip(regs,t): a(f'v_mov_b32 v{q}, v{r}')
        for r,q in zip(regs,t): a(f'{sw} v{r}, v{q}')
        for r,q in zip(regs,t): a(f'v_add_f32 v{r}, v{r}, v{q}')
def k0(a):
    a.label('k0_kernel')
    a(f's_cmp_ge_u32 s2, {NK0}'); a('s_cbranch_scc1 K0_END')
    ldarg(a,4,'ws')
    a('s_cmp_ge_u32 s2, 448'); a('s_cbranch_scc1 K0_D')
    a('s_cmp_ge_u32 s2, 416'); a('s_cbranch_scc1 K0_R4')
    a('s_cmp_ge_u32 s2, 320'); a('s_cbranch_scc1 K0_F')
    a('s_cmp_ge_u32 s2, 192'); a('s_cbranch_scc1 K0_L')
    ldarg(a,6,'wmod'); ldarg(a,8,'c')
    a(f's_mov_b32 s20, {hx(-LOG2E)}')
    a('s_and_b32 s12, s2, 3'); a('s_lshr_b32 s13, s2, 2')
    a('v_lshrrev_b32 v1, 3, v0'); a('s_lshl_b32 s14, s12, 7'); a('v_add_u32 v1, s14, v1')
    a('v_lshlrev_b32 v2, 1, v1'); a('v_mul_u32_u24 v3, 6144, v1')
    a('v_and_b32 v4, 7, v0'); a('v_lshlrev_b32 v4, 4, v4'); a('v_add_u32 v3, v3, v4')
    a('s_lshl_b32 s14, s13, 7'); a('v_add_u32 v3, s14, v3')
    a('s_lshl_b32 s15, s2, 10'); a('v_lshlrev_b32 v5, 2, v0'); a('v_add_u32 v5, s15, v5'); a('v_mov_b32 v6, 0')
    a('s_waitcnt lgkmcnt(0)'); a(';TS1')
    C=8; S=24; W=56; ACC=120; T=128
    for i in range(4): a(f'global_load_ushort v{C+i}, v2, s[8:9] offset:{i*64}')
    for i in range(4):
        a(f'global_load_dwordx4 {vr(W+4*i,4)}, v3, s[6:7]')
        if i<3: a('v_add_u32 v3, 196608, v3')
    for i in range(8): a(f'v_mov_b32 v{ACC+i}, 0')
    a('s_waitcnt vmcnt(4)')
    for i in range(4):
        a(f'v_lshlrev_b32 v{C+i}, 16, v{C+i}'); silu(a,S+2*i,C+i,T+i,20)
    for i in range(4): bf16r(a,S+2*i,S+2*i)
    for i in range(4):
        a(f's_waitcnt vmcnt({3-i})')
        for d in range(4):
            t=T+2*d
            unpack(a,t,t+1,W+4*i+d)
            a(f'v_pk_fma_f32 {vr(ACC+2*d,2)}, {vr(t,2)}, {vr(S+2*i,2)}, {vr(ACC+2*d,2)} op_sel_hi:[1,0,1]')
    a(';TS2')
    a('s_cmp_ge_u32 s2, 40'); a('s_cbranch_scc1 K0_MNZ')
    addc(a,16,4,WS_ST); a('global_store_dword v5, v6, s[16:17]')
    a.label('K0_MNZ')
    for i in range(8): dppadd(a,ACC+i,'row_ror:8')
    a('v_lshrrev_b32 v6, 4, v0'); a('v_lshlrev_b32 v6, 8, v6'); a('v_lshlrev_b32 v3, 1, v4'); a('v_add_u32 v6, v6, v3')
    a('s_mov_b32 s16, 0x00ff00ff'); a('s_mov_b32 s17, 0x00ff00ff'); a('s_mov_b64 exec, s[16:17]')
    a(f'ds_write_b128 v6, {vr(ACC,4)}'); a(f'ds_write_b128 v6, {vr(ACC+4,4)} offset:16')
    a('s_mov_b64 exec, -1')
    a('v_lshlrev_b32 v6, 2, v0')
    a('s_waitcnt lgkmcnt(0)'); a('s_barrier')
    a('v_readfirstlane_b32 s14, v0'); a('s_cmp_ge_u32 s14, 64'); a('s_cbranch_scc1 K0_END')
    for i in range(16): a(f'ds_read_b32 v{T+i}, v6 offset:{i*256}')
    a('s_mul_i32 s14, s12, 12288'); a('s_lshl_b32 s15, s13, 8'); a('s_add_u32 s14, s14, s15'); a(f's_add_u32 s14, s14, {WS_MODP}')
    a('s_add_u32 s4, s4, s14'); a('s_addc_u32 s5, s5, 0')
    a('s_waitcnt lgkmcnt(0)')
    for st in (8,4,2,1):
        for i in range(st): a(f'v_add_f32 v{T+i}, v{T+i}, v{T+i+st}')
    a(f'global_store_dword v6, v{T}, s[4:5]')
    a('s_endpgm')
    a.label('K0_L')
    ldarg(a,10,'x')
    a('s_sub_u32 s12, s2, 192')
    a('v_and_b32 v1, 63, v0'); a('v_lshrrev_b32 v2, 6, v0')
    a('v_lshlrev_b32 v5, 4, v1'); a('v_lshlrev_b32 v6, 12, v2'); a('v_add_u32 v5, v5, v6')
    a('s_lshl_b32 s13, s12, 14'); a('v_add_u32 v5, s13, v5')
    a('s_waitcnt lgkmcnt(0)'); a(';TS1')
    X=8; F=32; A=64; T=72
    for i in range(4): a(f'global_load_dwordx4 {vr(X+4*i,4)}, v5, s[10:11] offset:{i*1024}')
    a('v_and_b32 v6, 15, v1'); a('v_lshlrev_b32 v7, 2, v2')
    for i in range(4):
        a(f'v_add_u32 v{24+i}, {i}, v7'); a(f'v_xor_b32 v{24+i}, v{24+i}, v6'); a(f'v_lshlrev_b32 v{24+i}, 4, v{24+i}')
        a(f'v_lshl_add_u32 v{24+i}, v1, 8, v{24+i}')
    a('v_lshrrev_b32 v6, 4, v0'); a('v_and_b32 v7, 15, v0'); a('v_xor_b32 v7, v7, v6'); a('v_lshlrev_b32 v7, 4, v7')
    a('v_and_b32 v3, 1, v6'); a('v_lshl_add_u32 v7, v3, 9, v7'); a('v_lshrrev_b32 v6, 1, v6'); a('v_lshl_add_u32 v7, v6, 10, v7')
    a('s_lshr_b32 s13, s12, 1'); a('s_lshl_b32 s13, s13, 15'); a('s_and_b32 s14, s12, 1'); a('s_lshl_b32 s14, s14, 8'); a('s_add_u32 s13, s13, s14')
    a('s_add_u32 s4, s4, s13'); a('s_addc_u32 s5, s5, 0')
    a('v_lshlrev_b32 v6, 4, v0')
    for i in range(4):
        a(f's_waitcnt vmcnt({3-i})')
        for d in range(4): unpack(a,F+8*i+2*d,F+8*i+2*d+1,X+4*i+d)
    def rowsum(src):
        for i in range(4):
            b=src+8*i
            a(f'v_pk_add_f32 {vr(A+2*i,2)}, {vr(b,2)}, {vr(b+2,2)}')
        for i in range(4): a(f'v_pk_add_f32 {vr(A+2*i,2)}, {vr(A+2*i,2)}, {vr(F+8*i+4 if src==F else src+8*i+4,2)}')
        for i in range(4): a(f'v_pk_add_f32 {vr(A+2*i,2)}, {vr(A+2*i,2)}, {vr(src+8*i+6,2)}')
        for i in range(4): a(f'v_add_f32 v{A+2*i}, v{A+2*i}, v{A+2*i+1}')
    rowsum(F); wavesum(a,[A+2*i for i in range(4)],[T+i for i in range(4)])
    for i in range(4): a(f'v_mul_f32 v{A+2*i}, {hx(-1.0/512)}, v{A+2*i}')
    for i in range(4):
        for d in range(4): a(f'v_pk_add_f32 {vr(F+8*i+2*d,2)}, {vr(F+8*i+2*d,2)}, {vr(A+2*i,2)} op_sel_hi:[1,0]')
    for i in range(4):
        a(f'v_pk_mul_f32 {vr(A+2*i,2)}, {vr(F+8*i,2)}, {vr(F+8*i,2)}')
    for d in range(1,4):
        for i in range(4): a(f'v_pk_fma_f32 {vr(A+2*i,2)}, {vr(F+8*i+2*d,2)}, {vr(F+8*i+2*d,2)}, {vr(A+2*i,2)}')
    for i in range(4): a(f'v_add_f32 v{A+2*i}, v{A+2*i}, v{A+2*i+1}')
    wavesum(a,[A+2*i for i in range(4)],[T+i for i in range(4)])
    for i in range(4): a(f'v_mov_b32 v{T+i}, {hx(1e-5)}')
    for i in range(4): a(f'v_fmac_f32 v{T+i}, {hx(1.0/512)}, v{A+2*i}')
    for i in range(4): a(f'v_rsq_f32 v{A+2*i}, v{T+i}')
    for i in range(4):
        for d in range(4): a(f'v_pk_mul_f32 {vr(F+8*i+2*d,2)}, {vr(F+8*i+2*d,2)}, {vr(A+2*i,2)} op_sel_hi:[1,0]')
        for d in range(4): a(f'v_cvt_pk_bf16_f32 v{X+4*i+d}, v{F+8*i+2*d}, v{F+8*i+2*d+1}')
        a(f'ds_write_b128 v{24+i}, {vr(X+4*i,4)}')
    a('s_waitcnt lgkmcnt(0)'); a('s_barrier')
    for j in range(4): a(f'ds_read_b128 {vr(X+4*j,4)}, v6 offset:{j*4096}')
    for j in range(4):
        a(f's_waitcnt lgkmcnt({3-j})')
        a(f'global_store_dwordx4 v7, {vr(X+4*j,4)}, s[4:5]')
        if j<3: a('v_add_u32 v7, 8192, v7')
    a('s_endpgm')
    a.label('K0_F')
    ldarg(a,10,'wqkv')
    a('s_sub_u32 s12, s2, 320'); a('s_and_b32 s13, s12, 31'); a('s_lshr_b32 s12, s12, 5')
    a('v_and_b32 v1, 127, v0'); a('v_lshrrev_b32 v2, 7, v0')
    a('v_mul_u32_u24 v3, 24576, v2'); a('v_lshl_add_u32 v3, v1, 3, v3')
    a('s_mul_i32 s14, s13, 49152'); a('s_lshl_b32 s15, s12, 10'); a('s_add_u32 s14, s14, s15'); a('v_add_u32 v3, s14, v3')
    for i in range(1,4): a(f'v_add_u32 v{3+i}, {6144*i}, v3')
    a('s_waitcnt lgkmcnt(0)'); a(';TS1')
    R=8; O=32
    for e in range(8): a(f'global_load_dwordx2 {vr(R+2*e,2)}, v{3+(e>>1)}, s[10:11] offset:{(e&1)*3072}')
    a('v_lshrrev_b32 v7, 3, v1'); a('v_lshlrev_b32 v7, 15, v7'); a('v_and_b32 v1, 7, v1'); a('v_lshl_add_u32 v7, v1, 6, v7'); a('v_lshl_add_u32 v7, v2, 9, v7')
    a('s_lshl_b32 s14, s12, 19'); a('s_lshl_b32 s15, s13, 10'); a('s_add_u32 s14, s14, s15'); a(f's_add_u32 s14, s14, {WS_W}')
    a('s_add_u32 s4, s4, s14'); a('s_addc_u32 s5, s5, 0')
    a('s_mov_b32 s14, 0x05040100'); a('s_mov_b32 s15, 0x07060302')
    a('s_waitcnt vmcnt(0)')
    for c in range(4):
        for dd in range(4): a(f'v_perm_b32 v{O+4*c+dd}, v{R+2*(2*dd+1)+(c>>1)}, v{R+2*(2*dd)+(c>>1)}, s{14+(c&1)}')
        a(f'global_store_dwordx4 v7, {vr(O+4*c,4)}, s[4:5] offset:{16*c}')
    a('s_endpgm')
    a.label('K0_D')
    ldarg(a,10,'wd')
    a('s_sub_u32 s12, s2, 448')
    a('v_lshrrev_b32 v1, 5, v0'); a('v_and_b32 v2, 31, v0')
    a('v_lshlrev_b32 v3, 11, v1'); a('v_lshl_add_u32 v3, v2, 4, v3'); a('s_lshl_b32 s13, s12, 14'); a('v_add_u32 v3, s13, v3')
    a('s_waitcnt lgkmcnt(0)'); a(';TS1')
    for h in range(2):
        a(f'global_load_dwordx4 {vr(8+8*h,4)}, v3, s[10:11] offset:{h*512}'); a(f'global_load_dwordx4 {vr(12+8*h,4)}, v3, s[10:11] offset:{1024+h*512}')
    a('v_and_b32 v4, 7, v2'); a('v_xor_b32 v4, v4, v1'); a('v_lshlrev_b32 v4, 4, v4'); a('v_lshl_add_u32 v4, v2, 8, v4')
    a('v_lshlrev_b32 v5, 4, v0')
    a('v_bfe_u32 v6, v0, 4, 3'); a('v_and_b32 v7, 7, v0'); a('v_xor_b32 v6, v6, v7'); a('v_lshlrev_b32 v6, 4, v6')
    a('v_lshrrev_b32 v7, 3, v0'); a(f'v_mul_u32_u24 v7, {WDS}, v7'); a('v_add_u32 v6, v6, v7')
    a('s_lshl_b32 s13, s12, 7'); a(f's_add_u32 s13, s13, {WS_WD}'); a('s_add_u32 s4, s4, s13'); a('s_addc_u32 s5, s5, 0')
    a('v_add_u32 v24, 8192, v4')
    for h in range(2):
        a(f's_waitcnt vmcnt({2-2*h})')
        ad=4 if h==0 else 24
        a(f'ds_write2_b64 v{ad}, {vr(8+8*h,2)}, {vr(12+8*h,2)} offset0:0 offset1:1')
        a(f'ds_write2_b64 v{ad}, {vr(10+8*h,2)}, {vr(14+8*h,2)} offset0:16 offset1:17')
    a('s_waitcnt lgkmcnt(0)'); a('s_barrier')
    for i in range(4): a(f'ds_read_b128 {vr(8+4*i,4)}, v5 offset:{i*4096}')
    for i in range(4):
        a(f's_waitcnt lgkmcnt({3-i})')
        a(f'global_store_dwordx4 v6, {vr(8+4*i,4)}, s[4:5]')
        if i<3: a(f'v_add_u32 v6, {32*WDS}, v6')
    a('s_endpgm')
    a.label('K0_R4')
    ldarg(a,10,'wo')
    a('s_sub_u32 s12, s2, 416')
    a('v_lshlrev_b32 v1, 2, v0'); a('s_lshl_b32 s13, s12, 14'); a('v_add_u32 v1, s13, v1')
    a('s_waitcnt lgkmcnt(0)')
    R=8; O=32
    for d in range(16):
        a(f'global_load_dword v{R+d}, v1, s[10:11] offset:{(d&3)*1024}')
        if (d&3)==3 and d<15: a('v_add_u32 v1, 4096, v1')
    a('v_and_b32 v2, 15, v0'); a('v_lshlrev_b32 v2, 1, v2')
    a('v_and_b32 v3, 3, v2'); a('v_bfe_u32 v4, v2, 2, 2'); a('v_lshlrev_b32 v4, 3, v4'); a('v_add_u32 v3, v3, v4')
    a('v_lshrrev_b32 v4, 4, v2'); a('v_lshlrev_b32 v4, 2, v4'); a('v_add_u32 v3, v3, v4'); a('v_lshlrev_b32 v3, 4, v3')
    a('v_lshrrev_b32 v4, 4, v0'); a('v_lshlrev_b32 v4, 15, v4'); a('v_add_u32 v3, v3, v4')
    a('s_lshl_b32 s13, s12, 10'); a(f's_add_u32 s13, s13, {WS_WO}'); a('s_add_u32 s4, s4, s13'); a('s_addc_u32 s5, s5, 0')
    a('s_mov_b32 s14, 0x05040100'); a('s_mov_b32 s15, 0x07060302')
    a('s_waitcnt vmcnt(0)')
    for hf in range(2):
        for dd in range(4):
            e=2*dd; d=(e&3)+8*(e>>2)+4*hf
            a(f'v_perm_b32 v{O+8*hf+dd}, v{R+d+1}, v{R+d}, s14'); a(f'v_perm_b32 v{O+8*hf+4+dd}, v{R+d+1}, v{R+d}, s15')
        a(f'global_store_dwordx4 v3, {vr(O+8*hf,4)}, s[4:5] offset:{hf*512}'); a(f'global_store_dwordx4 v3, {vr(O+8*hf+4,4)}, s[4:5] offset:{hf*512+16}')
    a.label('K0_END')
    a('s_endpgm')
```

```python
from common import *
QSCALE=0.25*LOG2E
LDS_TAB=98304
LDS_BIAS=98304+4096
K1_LDS=98304+4096+512
class LQ:
    def __init__(s,a): s.a=a; s.n=0
    def op(s,t): s.a(t); s.n+=1; return s.n
    def wait(s,tag):
        k=s.n-tag
        assert k<=15
        s.a(f's_waitcnt lgkmcnt({k})')
def k1(a):
    a.label('k1_kernel')
    a('s_cmp_ge_u32 s2, 256'); a('s_cbranch_scc1 K1_END')
    ldarg(a,4,'ws'); ldarg(a,26,'wr')
    a('s_and_b32 s6, s2, 7'); a('s_lshr_b32 s7, s2, 3')
    a('s_lshr_b32 s8, s6, 1'); a('s_lshl_b32 s8, s8, 2'); a('s_and_b32 s9, s7, 3'); a('s_add_u32 s8, s8, s9')
    a('s_and_b32 s9, s6, 1'); a('s_lshl_b32 s9, s9, 3'); a('s_lshr_b32 s10, s7, 2'); a('s_add_u32 s9, s9, s10')
    a('v_readfirstlane_b32 s10, v0'); a('s_lshr_b32 s10, s10, 6')
    a('v_and_b32 v1, 63, v0'); a('v_lshlrev_b32 v2, 4, v1')
    a('s_lshl_b32 s11, s8, 2'); a('s_add_u32 s11, s11, s10')
    a('s_lshl_b32 s12, s9, 15'); a('s_lshl_b32 s13, s10, 11')
    a('v_lshlrev_b32 v6, 4, v0')
    a('s_waitcnt lgkmcnt(0)'); a(';TS1')
    addc(a,20,4,WS_MODP)
    S=16; ACC=112; B=160; T=196; U=228; C2=236; FN=242
    for q in range(4):
        a(f'global_load_dwordx4 {vr(T+4*q,4)}, v6, s[20:21]')
        if q<3: a('s_add_u32 s20, s20, 12288'); a('s_addc_u32 s21, s21, 0')
    a('s_add_u32 s18, s12, s13'); a(f's_add_u32 s18, s18, {WS_W}'); a('s_add_u32 s14, s4, s18'); a('s_addc_u32 s15, s5, 0')
    a('s_lshl_b32 s18, s11, 15'); a(f's_add_u32 s18, s18, {WS_N+4096}'); a('s_add_u32 s16, s4, s18'); a('s_addc_u32 s17, s5, 0')
    TS=16*32768
    for j in range(3): a(f'v_add_u32 v{3+j}, {j*TS}, v2')
    for c in range(4):
        if c==0: a('s_mov_b64 s[28:29], s[14:15]'); a('s_mov_b64 s[36:37], s[16:17]')
        else:
            a(f's_add_u32 s{28+2*c}, s14, {8192*c}'); a(f's_addc_u32 s{29+2*c}, s15, 0')
            a(f's_add_u32 s{36+2*c}, s16, {8192*c}'); a(f's_addc_u32 s{37+2*c}, s17, 0')
    def ldW(c): return [f'global_load_dwordx4 {vr(S+24*c+8*j+4*kk,4)}, v{3+j}, s[{28+2*c}:{29+2*c}] offset:{kk*1024}' for kk in range(2) for j in range(3)]
    def ldA(c): return [f'global_load_dwordx4 a[{4*(8*c+i)}:{4*(8*c+i)+3}], v2, s[{36+2*c}:{37+2*c}] offset:{i*1024-4096}' for i in range(8)]
    class VQ:
        n=4
        def op(s,t): a(t); s.n+=1; return s.n
        def wait(s,tag): a(f's_waitcnt vmcnt({s.n-tag})')
    V=VQ(); vt={'T':4}
    def issue(name,lst):
        for l in lst: vt[name]=V.op(l)
    issue('W0',ldW(0)); issue('W1',ldW(1)); issue('A0',ldA(0))
    for j in range(3): a(f'v_add_u32 v{7+j}, {j*32768}, v2')
    for j in range(3): a(f'v_add_u32 v{10+j}, s13, v{7+j}')
    a('v_lshrrev_b32 v13, 5, v1'); a('v_lshlrev_b32 v13, 5, v13'); a('s_lshl_b32 s18, s10, 7'); a(f's_add_u32 s18, s18, {LDS_TAB}'); a('v_add_u32 v13, s18, v13')
    a('v_and_b32 v14, 31, v1'); a('v_lshlrev_b32 v14, 2, v14'); a(f'v_add_u32 v14, {LDS_BIAS}, v14')
    for i in range(6): a(f'v_mov_b32 v{C2+i}, 0')
    a('v_mov_b32 v15, 0')
    a('s_lshl_b32 s18, s6, 10'); a('v_lshlrev_b32 v247, 2, v0'); a('v_add_u32 v247, s18, v247')
    a('v_lshrrev_b32 v248, 1, v247'); a('v_and_b32 v248, 1023, v248')
    V.wait(vt['T']); a(';TS2')
    for d in range(0,4,2):
        a(f'v_pk_add_f32 {vr(T+d,2)}, {vr(T+d,2)}, {vr(T+4+d,2)}'); a(f'v_pk_add_f32 {vr(T+8+d,2)}, {vr(T+8+d,2)}, {vr(T+12+d,2)}')
        a(f'v_pk_add_f32 {vr(T+d,2)}, {vr(T+d,2)}, {vr(T+8+d,2)}')
    for d in range(4): bf16r(a,T+d,T+d)
    a('s_cmp_lt_u32 s10, 2'); a('s_cbranch_scc1 K1_NS')
    for d in range(4): a(f'v_add_f32 v{T+d}, 1.0, v{T+d}')
    for d in range(4): bf16r(a,T+d,T+d)
    a.label('K1_NS')
    a(f'v_add_u32 v6, {LDS_TAB}, v6')
    a(f'ds_write_b128 v6, {vr(T,4)}')
    a('v_lshlrev_b32 v6, 2, v0'); a(f'ds_write_b32 v6, v15 offset:0' if False else f'v_add_u32 v6, {LDS_BIAS}, v6')
    a('s_cmp_ge_u32 s10, 2'); a('s_cbranch_scc1 K1_NZ')
    a('ds_write_b32 v6, v15')
    a.label('K1_NZ')
    for q in range(4): addc(a,44+2*q,4,WS_MODP+4096+12288*q)
    finl=[f'global_load_dword v{FN+q}, v247, s[{44+2*q}:{45+2*q}]' for q in range(4)]+[f'global_load_ushort v{FN+4}, v248, s[26:27]']
    a('s_waitcnt lgkmcnt(0)'); a('s_barrier')
    L=LQ(a)
    def tabrd(c):
        t=None
        for kk in range(2):
            o=c*512+kk*64
            L.op(f'ds_read_b128 {vr(T+16*kk,4)}, v13 offset:{o}'); L.op(f'ds_read_b128 {vr(T+16*kk+4,4)}, v13 offset:{o+16}')
            L.op(f'ds_read_b128 {vr(T+16*kk+8,4)}, v13 offset:{o+2048}'); t=L.op(f'ds_read_b128 {vr(T+16*kk+12,4)}, v13 offset:{o+2048+16}')
        return t
    def unit(c,j,kk):
        r=S+24*c+8*j+4*kk; o=[]
        for d in range(4): o+=[f'v_lshlrev_b32 v{U+2*d}, 16, v{r+d}', f'v_and_b32 v{U+2*d+1}, 0xffff0000, v{r+d}']
        for d in range(4):
            o.append(f'v_pk_fma_f32 {vr(C2+2*j,2)}, {vr(U+2*d,2)}, {vr(T+16*kk+2*d,2)}, {vr(C2+2*j,2)}')
            o.append(f'v_pk_mul_f32 {vr(U+2*d,2)}, {vr(U+2*d,2)}, {vr(T+16*kk+8+2*d,2)}')
        for d in range(4): o.append(f'v_cvt_pk_bf16_f32 v{r+d}, v{U+2*d}, v{U+2*d+1}')
        return o, f'ds_write_b128 v{10+j}, {vr(r,4)} offset:{c*8192+kk*1024}'
    def biasadd():
        for j in range(3): a(f'v_add_f32 v{C2+2*j}, v{C2+2*j}, v{C2+2*j+1}')
        for j in range(3): L.op(f'ds_add_f32 v14, v{C2+2*j} offset:{j*128}')
    us=[(j,kk) for kk in range(2) for j in range(3)]
    t=tabrd(0)
    V.wait(vt['W0']); L.wait(t)
    pend=[('W2',l) for l in ldW(2)]+[('A1',l) for l in ldA(1)]
    def vpop(n):
        for _ in range(n):
            if pend: nm,l=pend.pop(0); vt[nm]=V.op(l)
    for u in us:
        o,w=unit(0,*u)
        for x in o[:8]: a(x)
        vpop(1)
        for x in o[8:]: a(x)
        L.op(w); vpop(2 if u!=us[-1] else 9)
    a('s_waitcnt lgkmcnt(0)'); a('s_barrier'); a(';TS3')
    NB=3
    for c in range(4):
        tags={}
        def rd(k):
            for j in range(3): tags[k]=L.op(f'ds_read_b128 {vr(B+12*(k%NB)+4*j,4)}, v{7+j} offset:{(8*c+k)*1024}')
        rd(0); rd(1)
        if c<3: tt=tabrd(c+1)
        if c==0: pend+=[('W3',l) for l in ldW(3)]+[('A2',l) for l in ldA(2)]
        if c==1: pend+=[('A3',l) for l in ldA(3)]+[('F',l) for l in finl]
        V.wait(vt[f'A{c}'])
        if c<3: assert vt[f'W{c+1}']<=vt[f'A{c}']
        for i in range(8):
            if i+2<8: rd(i+2)
            L.wait(tags[i])
            b=B+12*(i%NB); k=8*c+i
            o=[];w=None
            if c<3 and 1<=i<=6: o,w=unit(c+1,*us[i-1])
            for j in range(3):
                cc='0' if k==0 else vr(ACC+16*j,16)
                if j<2: a(f'v_mfma_f32_32x32x16_bf16 {vr(ACC+16*j,16)}, {vr(b+4*j,4)}, a[{4*k}:{4*k+3}], {cc}')
                else:   a(f'v_mfma_f32_32x32x16_bf16 {vr(ACC+16*j,16)}, a[{4*k}:{4*k+3}], {vr(b+4*j,4)}, {cc}')
                if j==0 and c<3 and i==1: L.wait(tt)
                for x in o[7*j:7*j+7]: a(x)
                if j<2: vpop(1)
            if w: L.op(w)
            if c==2 and i==6: biasadd()
        vpop(9)
        if c<3: a('s_waitcnt lgkmcnt(0)'); a('s_barrier')
    a(';TS4')
    a('v_lshrrev_b32 v13, 5, v1'); a('v_lshlrev_b32 v13, 4, v13'); a(f'v_add_u32 v13, {LDS_BIAS}, v13')
    BI=S
    for j in range(2):
        for g in range(4): a(f'ds_read_b128 {vr(BI+16*j+4*g,4)}, v13 offset:{j*128+g*32}')
    a(f'ds_read_b32 v{BI+32}, v14 offset:256')
    a(f's_mov_b32 s20, {hx(QSCALE)}')
    a('s_lshl_b32 s18, s9, 17'); a('s_lshl_b32 s19, s11, 10'); a('s_add_u32 s18, s18, s19')
    a(f's_add_u32 s19, s18, {WS_Q}'); a('s_add_u32 s14, s4, s19'); a('s_addc_u32 s15, s5, 0')
    a(f's_add_u32 s19, s18, {WS_K}'); a('s_add_u32 s16, s4, s19'); a('s_addc_u32 s17, s5, 0')
    a(f's_add_u32 s19, s18, {WS_V}'); a('s_add_u32 s22, s4, s19'); a('s_addc_u32 s23, s5, 0')
    a('v_add_u32 v3, 0x10000, v2')
    a('v_bfe_u32 v4, v1, 4, 1'); a('v_lshlrev_b32 v4, 16, v4'); a('v_lshrrev_b32 v5, 5, v1'); a('v_lshlrev_b32 v5, 8, v5'); a('v_add_u32 v4, v4, v5')
    a('v_and_b32 v5, 15, v1'); a('v_lshlrev_b32 v5, 4, v5'); a('v_add_u32 v4, v4, v5')
    a('s_waitcnt lgkmcnt(0)')
    O=S+40
    for j in range(3):
        for r in range(0,16,2):
            if j<2: a(f'v_pk_add_f32 {vr(ACC+16*j+r,2)}, {vr(ACC+16*j+r,2)}, {vr(BI+16*j+r,2)}')
            else: a(f'v_pk_add_f32 {vr(ACC+16*j+r,2)}, {vr(ACC+16*j+r,2)}, {vr(BI+32,2)} op_sel_hi:[1,0]')
        if j==0:
            for r in range(0,16,2): a(f'v_pk_mul_f32 {vr(ACC+r,2)}, {vr(ACC+r,2)}, s[20:21] op_sel_hi:[1,0]')
        for d in range(8): a(f'v_cvt_pk_bf16_f32 v{O+8*j+d}, v{ACC+16*j+2*d}, v{ACC+16*j+2*d+1}')
        if j<2:
            sb=14+2*j
            a(f'global_store_dwordx4 v2, {vr(O+8*j,4)}, s[{sb}:{sb+1}]'); a(f'global_store_dwordx4 v3, {vr(O+8*j+4,4)}, s[{sb}:{sb+1}]')
        else:
            a(f'global_store_dwordx4 v4, {vr(O+8*j,4)}, s[22:23]'); a(f'global_store_dwordx4 v4, {vr(O+8*j+4,4)}, s[22:23] offset:512')
    a('s_cmp_ge_u32 s2, 8'); a('s_cbranch_scc1 K1_END')
    a('s_waitcnt vmcnt(6)')
    a(f'v_add_f32 v{FN}, v{FN}, v{FN+1}'); a(f'v_add_f32 v{FN+2}, v{FN+2}, v{FN+3}'); a(f'v_add_f32 v{FN}, v{FN}, v{FN+2}')
    bf16r(a,FN,FN)
    addc(a,16,4,WS_MOD)
    a('s_lshr_b32 s14, s2, 1'); a('s_cmp_lg_u32 s14, 2'); a('s_cbranch_scc1 K1_FS')
    a(f'v_add_f32 v{FN}, 1.0, v{FN}'); bf16r(a,FN,FN)
    a(f'v_lshlrev_b32 v{FN+4}, 16, v{FN+4}'); a(f'v_mul_f32 v{FN+4}, v{FN+4}, v{FN}')
    a('v_add_u32 v248, 4096, v247'); a(f'global_store_dword v248, v{FN+4}, s[16:17]')
    a.label('K1_FS')
    a(f'global_store_dword v247, v{FN}, s[16:17]')
    a.label('K1_END'); a('s_endpgm')
```

```python
import gen,sys
from common import *
PF=int(sys.argv[1])
def fa(a):
    a.label('k0_kernel')
    if PF:
        a('s_getpc_b64 s[10:11]'); a.label('PCL')
        a('s_add_u32 s10, s10, k1_kernel-PCL'); a('s_addc_u32 s11, s11, 0')
        a('v_lshlrev_b32 v1, 4, v0')
        for i in range(5):
            a(f'global_load_dwordx4 v[4:7], v1, s[10:11]'); a('v_add_u32 v1, 4096, v1')
        a('s_waitcnt vmcnt(0)')
    a('s_endpgm')
def f(a):
    a.label('k1_kernel')
    a(';TS1')
    for i in range(1024): a(f'v_add_f32 v{8+(i%32)}, v{40+(i%16)}, v{8+(i%32)}')
    a(';TS2')
    for i in range(1024): a(f'v_fma_f32 v{8+(i%32)}, v{40+(i%16)}, v{8+(i%32)}, v{41}')
    a(';TS3')
    a('s_mov_b32 s10, 16')
    a.label('LP')
    for i in range(64): a(f'v_pk_fma_f32 v[{8+2*(i%16)}:{9+2*(i%16)}], v[40:41], v[{8+2*(i%16)}:{9+2*(i%16)}], v[42:43]')
    a('s_sub_u32 s10, s10, 1'); a('s_cmp_lg_u32 s10, 0'); a('s_cbranch_scc1 LP')
    a(';TS4')
    for i in range(512): a(f'v_pk_fma_f32 v[{8+2*(i%16)}:{9+2*(i%16)}], v[40:41], v[{8+2*(i%16)}:{9+2*(i%16)}], v[42:43]')
    a(';TS5')
    a('s_endpgm')
gen.KS=[('k0_kernel',fa,64,256,0,64),('k1_kernel',f,256,256,0,64)]
gen.build(sys.argv[2],True)
```

```python
from asmlib import Asm, fix_hazards
NAME='adaLN_cond__sliding_block__moe_arch_mod__prompt'
KA=dict(x=0,wqkv=8,wo=16,wr=32,wg=40,wu=48,wd=56,c=64,wmod=72,out=80,dbg=88,ws=96)
WS_N=0x000000; WS_W=0x200000; WS_Q=0x400000; WS_K=0x600000; WS_V=0x800000
WS_O=0xA00000; WS_X1=0xC00000; WS_WO=0xE00000; WS_MOD=0xE80000; WS_ST=0xE90000
WS_ACT=0xE96000; WS_SEL=0xE98C00; WS_MODP=0xE84000; WS_CNT=0xE9A000; WS_GF=0xE99C00; WS_WD=0x1400000; WDS=11008
NKS=32
LOG2E=1.4426950408889634
import struct
def f2u(f): return struct.unpack('<I',struct.pack('<f',f))[0]
def hx(f): return '0x%08x'%f2u(f)
def vr(b,n=1): return 'v%d'%b if n==1 else 'v[%d:%d]'%(b,b+n-1)
def sr(b,n=1): return 's%d'%b if n==1 else 's[%d:%d]'%(b,b+n-1)
def ldarg(a,sreg,key): a(f's_load_dwordx2 s[{sreg}:{sreg+1}], s[0:1], {KA[key]}')
def addc(a,d,s,imm):
    a(f's_add_u32 s{d}, s{s}, {imm}'); a(f's_addc_u32 s{d+1}, s{s+1}, 0')
def bf16r(a,d,s,tmp=None):
    a(f'v_cvt_pk_bf16_f32 v{d}, v{s}, v{s}'); a(f'v_lshlrev_b32 v{d}, 16, v{d}')
def silu(a,d,x,t,sneg):
    a(f'v_mul_f32 v{t}, s{sneg}, v{x}'); a(f'v_exp_f32 v{t}, v{t}'); a(f'v_add_f32 v{t}, 1.0, v{t}')
    a(f'v_rcp_f32 v{t}, v{t}'); a(f'v_mul_f32 v{d}, v{x}, v{t}')
def unpack(a,lo,hi,src):
    a(f'v_lshlrev_b32 v{lo}, 16, v{src}'); a(f'v_and_b32 v{hi}, 0xffff0000, v{src}')
def halfsum(a,v,t,op='v_add_f32'):
    a(f'v_mov_b32 v{t}, v{v}'); a(f'v_permlane32_swap_b32 v{v}, v{t}'); a(f'{op} v{v}, v{v}, v{t}')
def dppadd(a,v,ctl): a(f'v_add_f32_dpp v{v}, v{v}, v{v} {ctl} row_mask:0xf bank_mask:0xf')

def codepf(a,lab,start,nbytes,v=8):
    a(f's_getpc_b64 s[60:61]'); a.label(lab)
    a(f's_add_u32 s60, s60, {start}-{lab}'); a('s_addc_u32 s61, s61, 0')
    a(f'v_lshlrev_b32 v{v}, 4, v0'); a(f'v_mov_b32 v{v+1}, s61'); a(f'v_add_co_u32 v{v}, vcc, s60, v{v}'); a(f'v_addc_co_u32 v{v+1}, vcc, 0, v{v+1}, vcc')
    n=(nbytes+4095)//4096
    for i in range(n):
        a(f'global_load_dwordx4 v[{v+2}:{v+5}], v[{v}:{v+1}], off')
        if i<n-1: a(f'v_add_co_u32 v{v}, vcc, 4096, v{v}'); a(f'v_addc_co_u32 v{v+1}, vcc, 0, v{v+1}, vcc')
```

```python
from common import *
NK0=550
PFBYTES=[24576]
def wavesum(a,regs,t):
    for c in ('quad_perm:[1,0,3,2]','quad_perm:[2,3,0,1]','row_half_mirror','row_mirror'):
        for r in regs: dppadd(a,r,c)
    for sw in ('v_permlane16_swap_b32','v_permlane32_swap_b32'):
        for r,q in zip(regs,t): a(f'v_mov_b32 v{q}, v{r}')
        for r,q in zip(regs,t): a(f'{sw} v{r}, v{q}')
        for r,q in zip(regs,t): a(f'v_add_f32 v{r}, v{r}, v{q}')
def k0(a):
    a.label('k0_kernel')
    a(f's_cmp_ge_u32 s2, {NK0}'); a('s_cbranch_scc1 K0_END')
    ldarg(a,4,'ws')
    a('s_cmp_ge_u32 s2, 534'); a('s_cbranch_scc1 K0_P')
    a('s_cmp_ge_u32 s2, 448'); a('s_cbranch_scc1 K0_D')
    a('s_cmp_ge_u32 s2, 416'); a('s_cbranch_scc1 K0_R4')
    a('s_cmp_ge_u32 s2, 320'); a('s_cbranch_scc1 K0_F')
    a('s_cmp_ge_u32 s2, 192'); a('s_cbranch_scc1 K0_L')
    ldarg(a,6,'wmod'); ldarg(a,8,'c')
    a(f's_mov_b32 s20, {hx(-LOG2E)}')
    a('s_and_b32 s12, s2, 3'); a('s_lshr_b32 s13, s2, 2')
    a('v_lshrrev_b32 v1, 3, v0'); a('s_lshl_b32 s14, s12, 7'); a('v_add_u32 v1, s14, v1')
    a('v_lshlrev_b32 v2, 1, v1'); a('v_mul_u32_u24 v3, 6144, v1')
    a('v_and_b32 v4, 7, v0'); a('v_lshlrev_b32 v4, 4, v4'); a('v_add_u32 v3, v3, v4')
    a('s_lshl_b32 s14, s13, 7'); a('v_add_u32 v3, s14, v3')
    a('s_lshl_b32 s15, s2, 10'); a('v_lshlrev_b32 v5, 2, v0'); a('v_add_u32 v5, s15, v5'); a('v_mov_b32 v6, 0')
    a('s_waitcnt lgkmcnt(0)'); a(';TS1')
    C=8; S=24; W=56; ACC=120; T=128
    for i in range(4): a(f'global_load_ushort v{C+i}, v2, s[8:9] offset:{i*64}')
    for i in range(4):
        a(f'global_load_dwordx4 {vr(W+4*i,4)}, v3, s[6:7]')
        if i<3: a('v_add_u32 v3, 196608, v3')
    for i in range(8): a(f'v_mov_b32 v{ACC+i}, 0')
    a('s_waitcnt vmcnt(4)')
    for i in range(4):
        a(f'v_lshlrev_b32 v{C+i}, 16, v{C+i}'); silu(a,S+2*i,C+i,T+i,20)
    for i in range(4): bf16r(a,S+2*i,S+2*i)
    for i in range(4):
        a(f's_waitcnt vmcnt({3-i})')
        for d in range(4):
            t=T+2*d
            unpack(a,t,t+1,W+4*i+d)
            a(f'v_pk_fma_f32 {vr(ACC+2*d,2)}, {vr(t,2)}, {vr(S+2*i,2)}, {vr(ACC+2*d,2)} op_sel_hi:[1,0,1]')
    a(';TS2')
    a('s_cmp_ge_u32 s2, 72'); a('s_cbranch_scc1 K0_MNZ')
    addc(a,16,4,WS_ST); a('global_store_dword v5, v6, s[16:17]')
    a.label('K0_MNZ')
    for i in range(8): dppadd(a,ACC+i,'row_ror:8')
    a('v_lshrrev_b32 v6, 4, v0'); a('v_lshlrev_b32 v6, 8, v6'); a('v_lshlrev_b32 v3, 1, v4'); a('v_add_u32 v6, v6, v3')
    a('s_mov_b32 s16, 0x00ff00ff'); a('s_mov_b32 s17, 0x00ff00ff'); a('s_mov_b64 exec, s[16:17]')
    a(f'ds_write_b128 v6, {vr(ACC,4)}'); a(f'ds_write_b128 v6, {vr(ACC+4,4)} offset:16')
    a('s_mov_b64 exec, -1')
    a('v_lshlrev_b32 v6, 2, v0')
    a('s_waitcnt lgkmcnt(0)'); a('s_barrier')
    a('v_readfirstlane_b32 s14, v0'); a('s_cmp_ge_u32 s14, 64'); a('s_cbranch_scc1 K0_END')
    for i in range(16): a(f'ds_read_b32 v{T+i}, v6 offset:{i*256}')
    a('s_mul_i32 s14, s12, 12288'); a('s_lshl_b32 s15, s13, 8'); a('s_add_u32 s14, s14, s15'); a(f's_add_u32 s14, s14, {WS_MODP}')
    a('s_add_u32 s4, s4, s14'); a('s_addc_u32 s5, s5, 0')
    a('s_waitcnt lgkmcnt(0)')
    for st in (8,4,2,1):
        for i in range(st): a(f'v_add_f32 v{T+i}, v{T+i}, v{T+i+st}')
    a(f'global_store_dword v6, v{T}, s[4:5]')
    a('s_endpgm')
    a.label('K0_L')
    ldarg(a,10,'x')
    a('s_sub_u32 s12, s2, 192')
    a('v_and_b32 v1, 63, v0'); a('v_lshrrev_b32 v2, 6, v0')
    a('v_lshlrev_b32 v5, 4, v1'); a('v_lshlrev_b32 v6, 12, v2'); a('v_add_u32 v5, v5, v6')
    a('s_lshl_b32 s13, s12, 14'); a('v_add_u32 v5, s13, v5')
    a('s_waitcnt lgkmcnt(0)'); a(';TS1')
    X=8; F=32; A=64; T=72
    for i in range(4): a(f'global_load_dwordx4 {vr(X+4*i,4)}, v5, s[10:11] offset:{i*1024}')
    a('v_and_b32 v6, 15, v1'); a('v_lshlrev_b32 v7, 2, v2')
    for i in range(4):
        a(f'v_add_u32 v{24+i}, {i}, v7'); a(f'v_xor_b32 v{24+i}, v{24+i}, v6'); a(f'v_lshlrev_b32 v{24+i}, 4, v{24+i}')
        a(f'v_lshl_add_u32 v{24+i}, v1, 8, v{24+i}')
    a('v_lshrrev_b32 v6, 4, v0'); a('v_and_b32 v7, 15, v0'); a('v_xor_b32 v7, v7, v6'); a('v_lshlrev_b32 v7, 4, v7')
    a('v_and_b32 v3, 1, v6'); a('v_lshl_add_u32 v7, v3, 9, v7'); a('v_lshrrev_b32 v6, 1, v6'); a('v_lshl_add_u32 v7, v6, 10, v7')
    a('s_lshr_b32 s13, s12, 1'); a('s_lshl_b32 s13, s13, 15'); a('s_and_b32 s14, s12, 1'); a('s_lshl_b32 s14, s14, 8'); a('s_add_u32 s13, s13, s14')
    a('s_add_u32 s4, s4, s13'); a('s_addc_u32 s5, s5, 0')
    a('v_lshlrev_b32 v6, 4, v0')
    for i in range(4):
        a(f's_waitcnt vmcnt({3-i})')
        for d in range(4): unpack(a,F+8*i+2*d,F+8*i+2*d+1,X+4*i+d)
    def rowsum(src):
        for i in range(4):
            b=src+8*i
            a(f'v_pk_add_f32 {vr(A+2*i,2)}, {vr(b,2)}, {vr(b+2,2)}')
        for i in range(4): a(f'v_pk_add_f32 {vr(A+2*i,2)}, {vr(A+2*i,2)}, {vr(F+8*i+4 if src==F else src+8*i+4,2)}')
        for i in range(4): a(f'v_pk_add_f32 {vr(A+2*i,2)}, {vr(A+2*i,2)}, {vr(src+8*i+6,2)}')
        for i in range(4): a(f'v_add_f32 v{A+2*i}, v{A+2*i}, v{A+2*i+1}')
    rowsum(F); wavesum(a,[A+2*i for i in range(4)],[T+i for i in range(4)])
    for i in range(4): a(f'v_mul_f32 v{A+2*i}, {hx(-1.0/512)}, v{A+2*i}')
    for i in range(4):
        for d in range(4): a(f'v_pk_add_f32 {vr(F+8*i+2*d,2)}, {vr(F+8*i+2*d,2)}, {vr(A+2*i,2)} op_sel_hi:[1,0]')
    for i in range(4):
        a(f'v_pk_mul_f32 {vr(A+2*i,2)}, {vr(F+8*i,2)}, {vr(F+8*i,2)}')
    for d in range(1,4):
        for i in range(4): a(f'v_pk_fma_f32 {vr(A+2*i,2)}, {vr(F+8*i+2*d,2)}, {vr(F+8*i+2*d,2)}, {vr(A+2*i,2)}')
    for i in range(4): a(f'v_add_f32 v{A+2*i}, v{A+2*i}, v{A+2*i+1}')
    wavesum(a,[A+2*i for i in range(4)],[T+i for i in range(4)])
    for i in range(4): a(f'v_mov_b32 v{T+i}, {hx(1e-5)}')
    for i in range(4): a(f'v_fmac_f32 v{T+i}, {hx(1.0/512)}, v{A+2*i}')
    for i in range(4): a(f'v_rsq_f32 v{A+2*i}, v{T+i}')
    for i in range(4):
        for d in range(4): a(f'v_pk_mul_f32 {vr(F+8*i+2*d,2)}, {vr(F+8*i+2*d,2)}, {vr(A+2*i,2)} op_sel_hi:[1,0]')
        for d in range(4): a(f'v_cvt_pk_bf16_f32 v{X+4*i+d}, v{F+8*i+2*d}, v{F+8*i+2*d+1}')
        a(f'ds_write_b128 v{24+i}, {vr(X+4*i,4)}')
    a('s_waitcnt lgkmcnt(0)'); a('s_barrier')
    for j in range(4): a(f'ds_read_b128 {vr(X+4*j,4)}, v6 offset:{j*4096}')
    for j in range(4):
        a(f's_waitcnt lgkmcnt({3-j})')
        a(f'global_store_dwordx4 v7, {vr(X+4*j,4)}, s[4:5]')
        if j<3: a('v_add_u32 v7, 8192, v7')
    a('s_endpgm')
    a.label('K0_F')
    ldarg(a,10,'wqkv')
    a('s_sub_u32 s12, s2, 320'); a('s_and_b32 s13, s12, 31'); a('s_lshr_b32 s12, s12, 5')
    a('v_and_b32 v1, 127, v0'); a('v_lshrrev_b32 v2, 7, v0')
    a('v_mul_u32_u24 v3, 24576, v2'); a('v_lshl_add_u32 v3, v1, 3, v3')
    a('s_mul_i32 s14, s13, 49152'); a('s_lshl_b32 s15, s12, 10'); a('s_add_u32 s14, s14, s15'); a('v_add_u32 v3, s14, v3')
    for i in range(1,4): a(f'v_add_u32 v{3+i}, {6144*i}, v3')
    a('s_waitcnt lgkmcnt(0)'); a(';TS1')
    R=8; O=32
    for e in range(8): a(f'global_load_dwordx2 {vr(R+2*e,2)}, v{3+(e>>1)}, s[10:11] offset:{(e&1)*3072}')
    a('v_lshrrev_b32 v7, 3, v1'); a('v_lshlrev_b32 v7, 15, v7'); a('v_and_b32 v1, 7, v1'); a('v_lshl_add_u32 v7, v1, 6, v7'); a('v_lshl_add_u32 v7, v2, 9, v7')
    a('s_lshl_b32 s14, s12, 19'); a('s_lshl_b32 s15, s13, 10'); a('s_add_u32 s14, s14, s15'); a(f's_add_u32 s14, s14, {WS_W}')
    a('s_add_u32 s4, s4, s14'); a('s_addc_u32 s5, s5, 0')
    a('s_mov_b32 s14, 0x05040100'); a('s_mov_b32 s15, 0x07060302')
    a('s_waitcnt vmcnt(0)')
    for c in range(4):
        for dd in range(4): a(f'v_perm_b32 v{O+4*c+dd}, v{R+2*(2*dd+1)+(c>>1)}, v{R+2*(2*dd)+(c>>1)}, s{14+(c&1)}')
        a(f'global_store_dwordx4 v7, {vr(O+4*c,4)}, s[4:5] offset:{16*c}')
    a('s_endpgm')
    a.label('K0_D')
    ldarg(a,10,'wd')
    a('s_sub_u32 s12, s2, 448')
    a('v_lshrrev_b32 v1, 5, v0'); a('v_and_b32 v2, 31, v0')
    a('v_lshlrev_b32 v3, 11, v1'); a('v_lshl_add_u32 v3, v2, 4, v3'); a('s_lshl_b32 s13, s12, 14'); a('v_add_u32 v3, s13, v3')
    a('s_waitcnt lgkmcnt(0)'); a(';TS1')
    for h in range(2):
        a(f'global_load_dwordx4 {vr(8+8*h,4)}, v3, s[10:11] offset:{h*512}'); a(f'global_load_dwordx4 {vr(12+8*h,4)}, v3, s[10:11] offset:{1024+h*512}')
    a('v_and_b32 v4, 7, v2'); a('v_xor_b32 v4, v4, v1'); a('v_lshlrev_b32 v4, 4, v4'); a('v_lshl_add_u32 v4, v2, 8, v4')
    a('v_lshlrev_b32 v5, 4, v0')
    a('v_bfe_u32 v6, v0, 4, 3'); a('v_and_b32 v7, 7, v0'); a('v_xor_b32 v6, v6, v7'); a('v_lshlrev_b32 v6, 4, v6')
    a('v_lshrrev_b32 v7, 3, v0'); a(f'v_mul_u32_u24 v7, {WDS}, v7'); a('v_add_u32 v6, v6, v7')
    a('s_lshl_b32 s13, s12, 7'); a(f's_add_u32 s13, s13, {WS_WD}'); a('s_add_u32 s4, s4, s13'); a('s_addc_u32 s5, s5, 0')
    a('v_add_u32 v24, 8192, v4')
    for h in range(2):
        a(f's_waitcnt vmcnt({2-2*h})')
        ad=4 if h==0 else 24
        a(f'ds_write2_b64 v{ad}, {vr(8+8*h,2)}, {vr(12+8*h,2)} offset0:0 offset1:1')
        a(f'ds_write2_b64 v{ad}, {vr(10+8*h,2)}, {vr(14+8*h,2)} offset0:16 offset1:17')
    a('s_waitcnt lgkmcnt(0)'); a('s_barrier')
    for i in range(4): a(f'ds_read_b128 {vr(8+4*i,4)}, v5 offset:{i*4096}')
    for i in range(4):
        a(f's_waitcnt lgkmcnt({3-i})')
        a(f'global_store_dwordx4 v6, {vr(8+4*i,4)}, s[4:5]')
        if i<3: a(f'v_add_u32 v6, {32*WDS}, v6')
    a('s_endpgm')
    a.label('K0_R4')
    ldarg(a,10,'wo')
    a('s_sub_u32 s12, s2, 416')
    a('v_lshlrev_b32 v1, 2, v0'); a('s_lshl_b32 s13, s12, 14'); a('v_add_u32 v1, s13, v1')
    a('s_waitcnt lgkmcnt(0)')
    R=8; O=32
    for d in range(16):
        a(f'global_load_dword v{R+d}, v1, s[10:11] offset:{(d&3)*1024}')
        if (d&3)==3 and d<15: a('v_add_u32 v1, 4096, v1')
    a('v_and_b32 v2, 15, v0'); a('v_lshlrev_b32 v2, 1, v2')
    a('v_and_b32 v3, 3, v2'); a('v_bfe_u32 v4, v2, 2, 2'); a('v_lshlrev_b32 v4, 3, v4'); a('v_add_u32 v3, v3, v4')
    a('v_lshrrev_b32 v4, 4, v2'); a('v_lshlrev_b32 v4, 2, v4'); a('v_add_u32 v3, v3, v4'); a('v_lshlrev_b32 v3, 4, v3')
    a('v_lshrrev_b32 v4, 4, v0'); a('v_lshlrev_b32 v4, 15, v4'); a('v_add_u32 v3, v3, v4')
    a('s_lshl_b32 s13, s12, 10'); a(f's_add_u32 s13, s13, {WS_WO}'); a('s_add_u32 s4, s4, s13'); a('s_addc_u32 s5, s5, 0')
    a('s_mov_b32 s14, 0x05040100'); a('s_mov_b32 s15, 0x07060302')
    a('s_waitcnt vmcnt(0)')
    for hf in range(2):
        for dd in range(4):
            e=2*dd; d=(e&3)+8*(e>>2)+4*hf
            a(f'v_perm_b32 v{O+8*hf+dd}, v{R+d+1}, v{R+d}, s14'); a(f'v_perm_b32 v{O+8*hf+4+dd}, v{R+d+1}, v{R+d}, s15')
        a(f'global_store_dwordx4 v3, {vr(O+8*hf,4)}, s[4:5] offset:{hf*512}'); a(f'global_store_dwordx4 v3, {vr(O+8*hf+4,4)}, s[4:5] offset:{hf*512+16}')
    a('s_endpgm')
    a.label('K0_P')
    codepf(a,'K0_PC','k1_kernel',PFBYTES[0]); codepf(a,'K0_PC2','K4_END-4096',4096)
    a('s_waitcnt vmcnt(0)')
    a.label('K0_END')
    a('s_endpgm')
```

```python
from common import *
QSCALE=0.25*LOG2E
LDS_TAB=98304
LDS_BIAS=98304+4096
LDS_PART=LDS_BIAS+1536
K1_LDS=98304+4096+3072
import os
K1X=os.environ.get('K1X','x')
class LQ:
    def __init__(s,a): s.a=a; s.n=0
    def op(s,t): s.a(t); s.n+=1; return s.n
    def wait(s,tag):
        k=s.n-tag
        assert k<=15
        s.a(f's_waitcnt lgkmcnt({k})')
def k1(a):
    a.label('k1_kernel')
    a('s_cmp_ge_u32 s2, 256'); a('s_cbranch_scc1 K1_END')
    ldarg(a,4,'ws'); ldarg(a,26,'wr')
    a('s_and_b32 s6, s2, 7'); a('s_lshr_b32 s7, s2, 3')
    a('s_lshr_b32 s8, s6, 1'); a('s_lshl_b32 s8, s8, 2'); a('s_and_b32 s9, s7, 3'); a('s_add_u32 s8, s8, s9')
    a('s_and_b32 s9, s6, 1'); a('s_lshl_b32 s9, s9, 3'); a('s_lshr_b32 s10, s7, 2'); a('s_add_u32 s9, s9, s10')
    a('v_readfirstlane_b32 s10, v0'); a('s_lshr_b32 s10, s10, 6')
    a('v_and_b32 v1, 63, v0'); a('v_lshlrev_b32 v2, 4, v1')
    a('s_lshl_b32 s11, s8, 2'); a('s_add_u32 s11, s11, s10')
    a('s_lshl_b32 s12, s9, 15'); a('s_lshl_b32 s13, s10, 11')
    a('v_lshlrev_b32 v6, 4, v0')
    a('s_waitcnt lgkmcnt(0)'); a(';TS1')
    addc(a,20,4,WS_MODP)
    S=16; ACC=112; B=160; T=196; U=228; C2=236; FN=242; TAB=248
    for q in range(4):
        a(f'global_load_dwordx4 {vr(T+4*q,4)}, v6, s[20:21]')
        if q<3: a('s_add_u32 s20, s20, 12288'); a('s_addc_u32 s21, s21, 0')
    a('s_add_u32 s18, s12, s13'); a(f's_add_u32 s18, s18, {WS_W}'); a('s_add_u32 s14, s4, s18'); a('s_addc_u32 s15, s5, 0')
    a('s_lshl_b32 s18, s11, 15'); a(f's_add_u32 s18, s18, {WS_N+4096}'); a('s_add_u32 s16, s4, s18'); a('s_addc_u32 s17, s5, 0')
    TS=16*32768
    for j in range(3): a(f'v_add_u32 v{3+j}, {j*TS}, v2')
    for c in range(4):
        if c==0: a('s_mov_b64 s[28:29], s[14:15]'); a('s_mov_b64 s[36:37], s[16:17]')
        else:
            a(f's_add_u32 s{28+2*c}, s14, {8192*c}'); a(f's_addc_u32 s{29+2*c}, s15, 0')
            a(f's_add_u32 s{36+2*c}, s16, {8192*c}'); a(f's_addc_u32 s{37+2*c}, s17, 0')
    def ldW(c): return [f'global_load_dwordx4 {vr(S+24*c+8*j+4*kk,4)}, v{3+j}, s[{28+2*c}:{29+2*c}] offset:{kk*1024}' for kk in range(2) for j in range(3)]
    def ldA(c): return [f'global_load_dwordx4 a[{4*(8*c+i)}:{4*(8*c+i)+3}], v2, s[{36+2*c}:{37+2*c}] offset:{i*1024-4096}' for i in range(8)]
    class VQ:
        n=4
        def op(s,t): a(t); s.n+=1; return s.n
        def wait(s,tag): a(f's_waitcnt vmcnt({s.n-tag})')
    V=VQ(); vt={'T':4}
    def issue(name,lst):
        for l in lst: vt[name]=V.op(l)
    issue('W0',ldW(0)); issue('W1',ldW(1)); issue('A0',ldA(0))
    for j in range(3): a(f'v_add_u32 v{7+j}, {j*32768}, v2')
    for j in range(3): a(f'v_add_u32 v{10+j}, s13, v{7+j}')
    a('v_lshrrev_b32 v13, 5, v1'); a('v_lshlrev_b32 v13, 5, v13'); a('s_lshl_b32 s18, s10, 7'); a(f's_add_u32 s18, s18, {LDS_TAB}'); a('v_add_u32 v13, s18, v13')
    a('v_and_b32 v14, 7, v1'); a('v_lshlrev_b32 v14, 2, v14'); a('v_add_u32 v13, v13, v14')
    a('v_and_b32 v14, 8, v1'); a('v_xor_b32 v14, 8, v14'); a('v_lshlrev_b32 v14, 8, v14'); a('v_add_u32 v13, v13, v14')
    a('s_mov_b32 s52, 0xffff0000')
    a('s_mul_i32 s53, s10, 384')
    a('v_and_b32 v14, 31, v1'); a('v_lshlrev_b32 v14, 2, v14'); a(f'v_add_u32 v14, {LDS_BIAS}, v14')
    a('v_lshlrev_b32 v15, 2, v1'); a(f'v_add_u32 v15, {LDS_BIAS}, v15')
    for i in range(6): a(f'v_mov_b32 v{C2+i}, 0')
    a('s_lshl_b32 s18, s6, 10'); a('v_lshlrev_b32 v247, 2, v0'); a('v_add_u32 v247, s18, v247')
    V.wait(vt['T']); a(';TS2')
    for d in range(0,4,2):
        a(f'v_pk_add_f32 {vr(T+d,2)}, {vr(T+d,2)}, {vr(T+4+d,2)}'); a(f'v_pk_add_f32 {vr(T+8+d,2)}, {vr(T+8+d,2)}, {vr(T+12+d,2)}')
        a(f'v_pk_add_f32 {vr(T+d,2)}, {vr(T+d,2)}, {vr(T+8+d,2)}')
    for d in range(4): bf16r(a,T+d,T+d)
    a('s_cmp_lt_u32 s10, 2'); a('s_cbranch_scc1 K1_NS')
    for d in range(4): a(f'v_add_f32 v{T+d}, 1.0, v{T+d}')
    for d in range(4): bf16r(a,T+d,T+d)
    a.label('K1_NS')
    a(f'v_add_u32 v6, {LDS_TAB}, v6')
    a(f'ds_write_b128 v6, {vr(T,4)}')
    for q in range(4): addc(a,44+2*q,4,WS_MODP+4096+12288*q)
    finl=[f'global_load_dword v{FN+q}, v247, s[{44+2*q}:{45+2*q}]' for q in range(4)]+[f'global_load_ushort v{FN+4}, v6, s[26:27]']
    a('s_waitcnt lgkmcnt(0)'); a('s_barrier')
    L=LQ(a)
    for c in range(4):
        for kk in range(2): a(f'ds_read_b32 v{TAB+2*c+kk}, v13 offset:{512*c+64*kk}')
    a('v_lshrrev_b32 v6, 1, v247'); a('v_and_b32 v6, 1023, v6')
    a('s_waitcnt lgkmcnt(0)')
    def unit(c,j,kk):
        r=S+24*c+8*j+4*kk; o=[]; tb=TAB+2*c+kk
        dp=lambda i: f'row_newbcast:{i} row_mask:0xf bank_mask:0xf'
        for d in (0,2):
            for e in range(2): o+=[f'v_lshlrev_b32 v{U+2*e}, 16, v{r+d+e}', f'v_and_b32 v{U+2*e+1}, s52, v{r+d+e}']
            for e in range(2):
                k=2*(d+e)
                o+=[f'v_fmac_f32_dpp v{C2+2*j}, v{tb}, v{U+2*e} {dp(8+k)}', f'v_fmac_f32_dpp v{C2+2*j+1}, v{tb}, v{U+2*e+1} {dp(9+k)}',
                    f'v_mul_f32_dpp v{U+2*e}, v{tb}, v{U+2*e} {dp(k)}', f'v_mul_f32_dpp v{U+2*e+1}, v{tb}, v{U+2*e+1} {dp(k+1)}']
            for e in range(2): o.append(f'v_cvt_pk_bf16_f32 v{r+d+e}, v{U+2*e}, v{U+2*e+1}')
        if 'd' in K1X: o=[x.split(' row_')[0].replace('_dpp','') for x in o]
        if 'f' in K1X: o=[x for x in o if 'fmac' not in x]
        return o, f'ds_write_b128 v{10+j}, {vr(r,4)} offset:{c*8192+kk*1024}'
    def biaspart():
        for j in range(3): a(f'v_add_f32 v{C2+2*j}, v{C2+2*j}, v{C2+2*j+1}')
        for j in range(3): halfsum(a,C2+2*j,U+j)
        a('v_add_u32 v13, s53, v14')
        for j in range(3): L.op(f'ds_write_b32 v13, v{C2+2*j} offset:{1536+j*128}')
    def biasrd():
        for w_ in range(4):
            L.op(f'ds_read_b32 v{T+w_}, v15 offset:{1536+w_*384}'); L.op(f'ds_read_b32 v{T+4+w_}, v14 offset:{1536+w_*384+256}')
    def biasfin():
        for b_ in (0,4):
            a(f'v_add_f32 v{T+b_}, v{T+b_}, v{T+b_+1}'); a(f'v_add_f32 v{T+b_+2}, v{T+b_+2}, v{T+b_+3}')
        for b_ in (0,4): a(f'v_add_f32 v{T+b_}, v{T+b_}, v{T+b_+2}')
        a('v_add_u32 v15, s53, v15')
        L.op(f'ds_write_b32 v15, v{T}'); L.op(f'ds_write_b32 v13, v{T+4} offset:256')
    us=[(j,kk) for kk in range(2) for j in range(3)]
    V.wait(vt['W0'])
    pend=[('W2',l) for l in ldW(2)]+([] if 'p' in K1X else [('A1',l) for l in ldA(1)])
    def vpop(n):
        for _ in range(n):
            if pend:
                nm,l=pend.pop(0)
                if 'g' in K1X: vt[nm]=V.n
                else: vt[nm]=V.op(l)
    for u in us:
        o,w=unit(0,*u)
        for x in o[:14]: a(x)
        vpop(1)
        for x in o[14:]: a(x)
        L.op(w); vpop(2 if u!=us[-1] else 9)
    a('s_waitcnt lgkmcnt(0)'); a('s_barrier'); a(';TS3')
    NB=3
    for c in range(4):
        tags={}
        def rd(k):
            if 'l' in K1X: tags[k]=L.n; return
            for j in range(3): tags[k]=L.op(f'ds_read_b128 {vr(B+12*(k%NB)+4*j,4)}, v{7+j} offset:{(8*c+k)*1024}')
        rd(0); rd(1)
        ops=[]
        if c<3 and 'u' not in K1X:
            for u in us:
                o,w=unit(c+1,*u); ops+=o+[w]
        if c==0: pend+=([('A1',l) for l in ldA(1)] if 'p' in K1X else [])+[('W3',l) for l in ldW(3)]+[('A2',l) for l in ldA(2)]
        if c==1: pend+=[('A3',l) for l in ldA(3)]+[('F',l) for l in finl]
        V.wait(vt[f'A{c}'])
        if c<3: assert vt[f'W{c+1}']<=vt[f'A{c}']
        for i in range(8):
            if i+2<8: rd(i+2)
            L.wait(tags[i])
            b=B+12*(i%NB); k=8*c+i
            for j in range(3):
                cc='0' if k==0 else vr(ACC+16*j,16)
                if j<2: a(f'v_mfma_f32_32x32x16_bf16 {vr(ACC+16*j,16)}, {vr(b+4*j,4)}, a[{4*k}:{4*k+3}], {cc}')
                else:   a(f'v_mfma_f32_32x32x16_bf16 {vr(ACC+16*j,16)}, a[{4*k}:{4*k+3}], {vr(b+4*j,4)}, {cc}')
                for _ in range(7):
                    if ops:
                        x=ops.pop(0)
                        if x.startswith('ds_'):
                            if 'w' not in K1X: L.op(x)
                            if ops: a(ops.pop(0))
                        else: a(x)
                if j<2: vpop(1)
            if c==3 and i==1: biasrd()
            if c==3 and i==4: biasfin()
        for x in ops:
            if x.startswith('ds_'): L.op(x)
            else: a(x)
        if c==2: biaspart()
        vpop(9)
        if c<3: a('s_waitcnt lgkmcnt(0)'); a('s_barrier')
        if c<2: a(f';TS{5+c}')
    a(';TS4')
    a('v_lshrrev_b32 v13, 5, v1'); a('v_lshlrev_b32 v13, 4, v13'); a(f'v_add_u32 v13, {LDS_BIAS}, v13'); a('v_add_u32 v13, s53, v13'); a('v_add_u32 v14, s53, v14')
    BI=S
    for j in range(2):
        for g in range(4): a(f'ds_read_b128 {vr(BI+16*j+4*g,4)}, v13 offset:{j*128+g*32}')
    a(f'ds_read_b32 v{BI+32}, v14 offset:256')
    a(f's_mov_b32 s20, {hx(QSCALE)}')
    a('s_lshl_b32 s18, s9, 17'); a('s_lshl_b32 s19, s11, 10'); a('s_add_u32 s18, s18, s19')
    a(f's_add_u32 s19, s18, {WS_Q}'); a('s_add_u32 s14, s4, s19'); a('s_addc_u32 s15, s5, 0')
    a(f's_add_u32 s19, s18, {WS_K}'); a('s_add_u32 s16, s4, s19'); a('s_addc_u32 s17, s5, 0')
    a(f's_add_u32 s19, s18, {WS_V}'); a('s_add_u32 s22, s4, s19'); a('s_addc_u32 s23, s5, 0')
    a('v_add_u32 v3, 0x10000, v2')
    a('v_bfe_u32 v4, v1, 4, 1'); a('v_lshlrev_b32 v4, 16, v4'); a('v_lshrrev_b32 v5, 5, v1'); a('v_lshlrev_b32 v5, 8, v5'); a('v_add_u32 v4, v4, v5')
    a('v_and_b32 v5, 15, v1'); a('v_lshlrev_b32 v5, 4, v5'); a('v_add_u32 v4, v4, v5')
    a('s_waitcnt lgkmcnt(0)')
    O=S+40
    for j in range(3):
        for r in range(0,16,2):
            if j<2: a(f'v_pk_add_f32 {vr(ACC+16*j+r,2)}, {vr(ACC+16*j+r,2)}, {vr(BI+16*j+r,2)}')
            else: a(f'v_pk_add_f32 {vr(ACC+16*j+r,2)}, {vr(ACC+16*j+r,2)}, {vr(BI+32,2)} op_sel_hi:[1,0]')
        if j==0:
            for r in range(0,16,2): a(f'v_pk_mul_f32 {vr(ACC+r,2)}, {vr(ACC+r,2)}, s[20:21] op_sel_hi:[1,0]')
        for d in range(8): a(f'v_cvt_pk_bf16_f32 v{O+8*j+d}, v{ACC+16*j+2*d}, v{ACC+16*j+2*d+1}')
        if j<2:
            sb=14+2*j
            a(f'global_store_dwordx4 v2, {vr(O+8*j,4)}, s[{sb}:{sb+1}]'); a(f'global_store_dwordx4 v3, {vr(O+8*j+4,4)}, s[{sb}:{sb+1}]')
        else:
            a(f'global_store_dwordx4 v4, {vr(O+8*j,4)}, s[22:23]'); a(f'global_store_dwordx4 v4, {vr(O+8*j+4,4)}, s[22:23] offset:512')
    a('s_cmp_ge_u32 s2, 8'); a('s_cbranch_scc1 K1_END')
    a('s_waitcnt vmcnt(6)')
    a(f'v_add_f32 v{FN}, v{FN}, v{FN+1}'); a(f'v_add_f32 v{FN+2}, v{FN+2}, v{FN+3}'); a(f'v_add_f32 v{FN}, v{FN}, v{FN+2}')
    bf16r(a,FN,FN)
    addc(a,16,4,WS_MOD)
    a('s_lshr_b32 s14, s2, 1'); a('s_cmp_lg_u32 s14, 2'); a('s_cbranch_scc1 K1_FS')
    a(f'v_add_f32 v{FN}, 1.0, v{FN}'); bf16r(a,FN,FN)
    a(f'v_lshlrev_b32 v{FN+4}, 16, v{FN+4}'); a(f'v_mul_f32 v{FN+4}, v{FN+4}, v{FN}')
    a('v_add_u32 v6, 4096, v247'); a(f'global_store_dword v6, v{FN+4}, s[16:17]')
    a.label('K1_FS')
    a(f'global_store_dword v247, v{FN}, s[16:17]')
    a.label('K1_END'); a('s_endpgm')
```

```python
from common import *
import k3
NEG=hx(-1e30)
def k2(a):
    a.label('k2_kernel')
    a('s_cmp_ge_u32 s2, 256'); a('s_cbranch_scc1 K2_END')
    ldarg(a,4,'ws'); ldarg(a,26,'x')
    a('s_and_b32 s6, s2, 7'); a('s_lshr_b32 s7, s2, 3')
    a('s_lshr_b32 s8, s2, 5')
    a('s_and_b32 s7, s7, 3'); a('s_lshl_b32 s9, s6, 2'); a('s_add_u32 s9, s9, s7')
    a('s_lshr_b32 s45, s6, 2'); a('s_lshl_b32 s45, s45, 2'); a('s_add_u32 s45, s45, s7')
    a('v_readfirstlane_b32 s10, v0'); a('s_lshr_b32 s10, s10, 6')
    a('v_and_b32 v1, 63, v0'); a('v_lshlrev_b32 v2, 4, v1')
    a('s_lshl_b32 s11, s9, 6'); a('s_lshl_b32 s12, s8, 3'); a('s_add_u32 s11, s11, s12')
    a('s_lshl_b32 s13, s10, 1'); a('s_add_u32 s13, s13, s11'); a('s_lshl_b32 s13, s13, 10')
    a('s_add_u32 s14, s11, s10'); a('s_lshl_b32 s14, s14, 10')
    a('s_waitcnt lgkmcnt(0)'); a(';TS1')
    a(f's_add_u32 s15, s13, {WS_K-8192}'); a('s_add_u32 s16, s4, s15'); a('s_addc_u32 s17, s5, 0')
    a(f's_add_u32 s15, s13, {WS_V-8192}'); a('s_add_u32 s18, s4, s15'); a('s_addc_u32 s19, s5, 0')
    a(f's_add_u32 s15, s14, {WS_Q}'); a('s_add_u32 s20, s4, s15'); a('s_addc_u32 s21, s5, 0')
    KL=0; VL=16384; OL=32768
    a('s_lshl_b32 s22, s10, 11'); a('s_mov_b32 m0, s22')
    a('global_load_lds_dwordx4 v2, s[16:17]'); a('global_load_lds_dwordx4 v2, s[16:17] offset:1024')
    Q=4
    a(f'global_load_dwordx4 {vr(Q,4)}, v2, s[20:21]')
    a(f's_add_u32 m0, s22, {VL}')
    a('global_load_lds_dwordx4 v2, s[18:19]'); a('global_load_lds_dwordx4 v2, s[18:19] offset:1024')
    for i in range(4): a(f'v_mov_b32 v{8+i}, 0x3f803f80')
    a('v_lshlrev_b32 v3, 4, v0')
    a(f'ds_write_b128 v3, {vr(8,4)} offset:{OL}'); a(f'ds_write_b128 v3, {vr(8,4)} offset:{OL+8192}')
    S=96
    a('v_and_b32 v12, 31, v1'); a('v_lshrrev_b32 v13, 5, v1'); a('v_lshlrev_b32 v14, 2, v13'); a('v_sub_u32 v12, v12, v14')
    a(f'v_mov_b32 v14, {NEG}'); a('v_mov_b32 v15, 0')
    a('s_sub_u32 s23, 8, s10'); a('s_cmp_eq_u32 s8, 0'); a('s_cselect_b32 s23, s23, 0')
    for r in range(16):
        c=(r&3)+8*(r>>2)
        a(f'v_cmp_ge_i32 vcc, v12, {c}')
        a(f'v_cndmask_b32 v{S+128+r}, v14, v15, vcc'); a(f'v_cndmask_b32 v{S+r}, v15, v14, vcc')
    a('s_lshl_b32 s24, s10, 10'); a('v_add_u32 v3, s24, v2')
    a('v_and_b32 v8, 15, v1'); a('v_lshlrev_b32 v8, 4, v8'); a('v_lshlrev_b32 v9, 8, v13'); a('v_add_u32 v8, v8, v9')
    a(f's_add_u32 s24, s24, {VL}'); a('v_add_u32 v8, s24, v8'); a(f'v_mov_b32 v9, {OL}')
    a('v_and_b32 v10, 16, v1'); a('v_cmp_eq_u32 vcc, 0, v10'); a('v_cndmask_b32 v8, v9, v8, vcc')
    a('s_cmp_eq_u32 s23, 0'); a('s_cbranch_scc1 K2_NOINV')
    for i in range(8):
        a(f's_cmp_le_u32 s23, {i}'); a('s_cbranch_scc1 K2_NOINV')
        for r in range(16): a(f'v_mov_b32 v{S+16*i+r}, v14')
    a.label('K2_NOINV')
    a('s_waitcnt vmcnt(2) lgkmcnt(0)'); a('s_barrier'); a(';TS2')
    KB=16
    for i in range(9): a(f'ds_read_b128 {vr(KB+4*i,4)}, v3 offset:{i*1024}')
    for i in range(9):
        a(f's_waitcnt lgkmcnt({8-i})')
        d=vr(S+16*i,16)
        if i in (0,8):
            a(f'v_mfma_f32_32x32x16_bf16 {d}, {vr(KB+4*i,4)}, {vr(Q,4)}, {d}')
        else:
            a(f's_cmp_gt_u32 s23, {i}'); a(f's_cbranch_scc1 K2_I{i}')
            a(f'v_mfma_f32_32x32x16_bf16 {d}, {vr(KB+4*i,4)}, {vr(Q,4)}, 0'); a(f's_branch K2_J{i}')
            a.label(f'K2_I{i}')
            a(f'v_mfma_f32_32x32x16_bf16 {d}, {vr(KB+4*i,4)}, {vr(Q,4)}, {d}')
            a.label(f'K2_J{i}')
    a('s_waitcnt vmcnt(0)'); a('s_barrier'); a(';TS3')
    a('s_lshl_b32 s28, s45, 16'); a('s_lshl_b32 s29, s10, 13'); a('s_add_u32 s28, s28, s29')
    a(f's_add_u32 s28, s28, {WS_WO}'); a('s_add_u32 s30, s4, s28'); a('s_addc_u32 s31, s5, 0')
    a('s_add_u32 s29, s29, 65536')
    for c in range(2):
        a(f's_add_u32 m0, s29, {c*4096}')
        for i in range(4): a(f'global_load_lds_dwordx4 v2, s[30:31] offset:{i*1024}')
        if c<1: a('s_add_u32 s30, s30, 4096'); a('s_addc_u32 s31, s31, 0')
    VB=16; NV=18
    for i in range(9):
        for m in range(2): a(f'ds_read_b128 {vr(VB+8*i+4*m,4)}, v8 offset:{i*1024+m*512}')
    M=88
    for k in range(4): a(f'v_max3_f32 v{M+k}, v{S+3*k}, v{S+3*k+1}, v{S+3*k+2}')
    idx=12; k=0
    while idx<144:
        a(f'v_max3_f32 v{M+k}, v{M+k}, v{S+idx}, v{S+idx+1}'); idx+=2; k=(k+1)&3
    a(f'v_max3_f32 v{M}, v{M}, v{M+1}, v{M+2}'); a(f'v_max_f32 v{M}, v{M}, v{M+3}')
    halfsum(a,M,M+1,'v_max_f32')
    a(f'v_sub_f32 v{M}, 0, v{M}')
    O=240
    for i in range(9):
        b=S+16*i
        for r in range(0,16,2): a(f'v_pk_add_f32 {vr(b+r,2)}, {vr(b+r,2)}, {vr(M,2)} op_sel_hi:[1,0]')
        for r in range(16): a(f'v_exp_f32 v{b+r}, v{b+r}')
        for r in range(8): a(f'v_cvt_pk_bf16_f32 v{b+r}, v{b+2*r}, v{b+2*r+1}')
        if i==0: a('s_waitcnt lgkmcnt(0)')
        for m in range(2):
            cc='0' if (i==0 and m==0) else vr(O,16)
            a(f'v_mfma_f32_32x32x16_bf16 {vr(O,16)}, {vr(VB+8*i+4*m,4)}, {vr(b+4*m,4)}, {cc}')
    a(f'v_rcp_f32 v{M}, v{O+8}')
    for r in range(0,8,2): a(f'v_pk_mul_f32 {vr(O+r,2)}, {vr(O+r,2)}, {vr(M,2)} op_sel_hi:[1,0]')
    for d in range(4): a(f'v_cvt_pk_bf16_f32 v{4+d}, v{O+2*d}, v{O+2*d+1}')
    a('s_lshl_b32 s12, s8, 3'); a('s_add_u32 s12, s12, s10'); a('s_lshl_b32 s12, s12, 5'); a('s_add_u32 s12, s12, s9'); a('s_lshl_b32 s12, s12, 10')
    a(f's_add_u32 s12, s12, {WS_O}'); a('s_add_u32 s40, s4, s12'); a('s_addc_u32 s41, s5, 0')
    a(f'global_store_dwordx4 v2, {vr(4,4)}, s[40:41] sc1')
    a('s_waitcnt vmcnt(0)'); a('s_barrier'); a(';TS6')
    k3.k3body(a)
    a.label('K2_END'); a('s_endpgm')
```

```python
from common import *
import os
def k3body(a):
    a(f's_lshl_b32 s42, s8, 12'); a(f's_add_u32 s42, s42, {WS_CNT}'); a('s_add_u32 s42, s4, s42'); a('s_addc_u32 s43, s5, 0')
    V=os.environ.get('K3V','2')
    def flagstore():
        a('s_and_b32 s44, s2, 31'); a('s_lshl_b32 s44, s44, 2'); a('v_lshlrev_b32 v12, 7, v1'); a('v_add_u32 v12, s44, v12'); a('v_mov_b32 v13, 1')
        a('s_mov_b32 exec_hi, 0'); a('global_store_dword v12, v13, s[42:43] sc1')
    def poll():
        a('v_and_b32 v12, 31, v1'); a('v_lshlrev_b32 v12, 2, v12'); a('s_and_b32 s44, s2, 31'); a('s_lshl_b32 s44, s44, 7'); a('v_add_u32 v12, s44, v12')
        a.label('K3_POLL')
        a('global_load_dword v13, v12, s[42:43] sc1'); a('s_waitcnt vmcnt(0)')
        a('v_cmp_eq_u32 vcc, 0, v13'); a('s_cbranch_vccnz K3_POLL')
    a('s_cmp_lt_u32 s10, 4'); a('s_cbranch_scc1 K3_NA')
    if V=='1':
        a('s_cmp_gt_u32 s10, 5'); a('s_cbranch_scc1 K2_END')
        a('s_cmp_eq_u32 s10, 4'); a('s_cbranch_scc1 K3_PW')
        flagstore(); a('s_branch K2_END')
        a.label('K3_PW'); poll(); a('s_barrier'); a('s_branch K2_END')
    else:
        a('s_cmp_gt_u32 s10, 4'); a('s_cbranch_scc1 K2_END')
        flagstore(); a('s_mov_b64 exec, -1')
        if V=='2': a('s_waitcnt vmcnt(0)')
        poll(); a('s_barrier'); a('s_branch K2_END')
    a.label('K3_NA')
    a('s_and_b32 s11, s2, 3'); a('s_lshl_b32 s8, s8, 2'); a('s_add_u32 s8, s8, s11'); a('s_mov_b32 s9, s45')
    a('s_lshr_b32 s11, s10, 1'); a('s_and_b32 s12, s10, 1')
    a('v_and_b32 v3, 31, v1'); a('v_lshrrev_b32 v4, 5, v1')
    a('s_lshl_b32 s18, s8, 6'); a('s_lshl_b32 s19, s11, 5'); a('s_add_u32 s18, s18, s19'); a('v_add_u32 v5, s18, v3')
    a('s_lshl_b32 s18, s9, 6'); a('s_lshl_b32 s19, s12, 5'); a('s_add_u32 s18, s18, s19'); a('v_lshlrev_b32 v6, 4, v4'); a('v_add_u32 v6, s18, v6')
    a('v_lshlrev_b32 v7, 10, v5'); a('v_lshlrev_b32 v8, 1, v6'); a('v_add_u32 v7, v7, v8')
    a('v_lshlrev_b32 v8, 2, v6')
    X=16; GA=24; U=40
    addc(a,20,4,WS_MOD); addc(a,22,4,WS_MOD+8192)
    a(f'global_load_dwordx4 {vr(X,4)}, v7, s[26:27]'); a(f'global_load_dwordx4 {vr(X+4,4)}, v7, s[26:27] offset:16')
    for i in range(4): a(f'global_load_dwordx4 {vr(GA+4*i,4)}, v8, s[20:21] offset:{16*i}')
    for i in range(4): a(f'global_load_dwordx4 {vr(U+4*i,4)}, v8, s[22:23] offset:{16*i}')
    a('s_lshl_b32 s13, s8, 1'); a('s_add_u32 s13, s13, s12'); a('s_lshl_b32 s13, s13, 15'); a('s_lshl_b32 s14, s11, 12'); a('s_add_u32 s13, s13, s14'); a(f's_add_u32 s13, s13, {WS_O}')
    a('s_add_u32 s16, s4, s13'); a('s_addc_u32 s17, s5, 0')
    a('s_lshl_b32 s15, s12, 15'); a('s_add_u32 s15, s15, s14')
    a('s_barrier'); a(';TS4')
    for c in range(4):
        a(f's_add_u32 m0, s15, {c*8192}')
        for i in range(4): a(f'global_load_lds_dwordx4 v2, s[16:17] offset:{i*1024}')
        if c<3: a('s_add_u32 s16, s16, 8192'); a('s_addc_u32 s17, s17, 0')
    a('s_lshl_b32 s18, s11, 15'); a('v_add_u32 v9, s18, v2')
    a('s_lshl_b32 s18, s12, 15'); a('s_add_u32 s18, s18, 65536'); a('v_add_u32 v10, s18, v2')
    B=64; ACC=96; NB=4
    def rd(k):
        a(f'ds_read_b128 {vr(B+8*(k%NB),4)}, v10 offset:{k*1024}'); a(f'ds_read_b128 {vr(B+8*(k%NB)+4,4)}, v9 offset:{k*1024}')
    for c in range(4):
        a(f's_waitcnt vmcnt({12-4*c})'); a('s_barrier')
        if c==0: a(';TS5')
        for i in range(3): rd(8*c+i)
        for i in range(8):
            k=8*c+i
            if i+3<8: rd(k+3)
            a(f's_waitcnt lgkmcnt({2*min(7-i,3)})')
            cc='0' if k==0 else vr(ACC,16)
            a(f'v_mfma_f32_32x32x16_bf16 {vr(ACC,16)}, {vr(B+8*(k%NB),4)}, {vr(B+8*(k%NB)+4,4)}, {cc}')
    a('s_waitcnt vmcnt(0)')
    T=64
    XF=80
    for d in range(8): unpack(a,XF+2*d,XF+2*d+1,X+d)
    for d in range(8): a(f'v_cvt_pk_bf16_f32 v{T+d}, v{ACC+2*d}, v{ACC+2*d+1}')
    for d in range(8): unpack(a,ACC+2*d,ACC+2*d+1,T+d)
    for d in range(8): a(f'v_pk_mul_f32 {vr(ACC+2*d,2)}, {vr(ACC+2*d,2)}, {vr(GA+2*d,2)}')
    for d in range(8): a(f'v_cvt_pk_bf16_f32 v{T+d}, v{ACC+2*d}, v{ACC+2*d+1}')
    for d in range(8): unpack(a,ACC+2*d,ACC+2*d+1,T+d)
    for d in range(8): a(f'v_pk_add_f32 {vr(ACC+2*d,2)}, {vr(ACC+2*d,2)}, {vr(XF+2*d,2)}')
    for d in range(8): a(f'v_cvt_pk_bf16_f32 v{T+d}, v{ACC+2*d}, v{ACC+2*d+1}')
    addc(a,20,4,WS_X1)
    a(f'global_store_dwordx4 v7, {vr(T,4)}, s[20:21]'); a(f'global_store_dwordx4 v7, {vr(T+4,4)}, s[20:21] offset:16')
    for d in range(8): unpack(a,ACC+2*d,ACC+2*d+1,T+d)
    S1=XF; S2=XF+2; S3=XF+4
    a(f'v_pk_add_f32 {vr(S1,2)}, {vr(ACC,2)}, {vr(ACC+2,2)}'); a(f'v_pk_mul_f32 {vr(S2,2)}, {vr(ACC,2)}, {vr(ACC,2)}'); a(f'v_pk_mul_f32 {vr(S3,2)}, {vr(ACC,2)}, {vr(U,2)}')
    for d in range(1,8):
        if d>1: a(f'v_pk_add_f32 {vr(S1,2)}, {vr(S1,2)}, {vr(ACC+2*d,2)}')
        a(f'v_pk_fma_f32 {vr(S2,2)}, {vr(ACC+2*d,2)}, {vr(ACC+2*d,2)}, {vr(S2,2)}')
        a(f'v_pk_fma_f32 {vr(S3,2)}, {vr(ACC+2*d,2)}, {vr(U+2*d,2)}, {vr(S3,2)}')
    for s in (S1,S2,S3):
        a(f'v_add_f32 v{s}, v{s}, v{s+1}'); halfsum(a,s,s+1)
    a('s_mul_i32 s18, s12, 768'); a('s_lshl_b32 s19, s11, 7'); a('s_add_u32 s18, s18, s19'); a('s_add_u32 s18, s18, 131072')
    a('v_lshlrev_b32 v3, 2, v3'); a('v_add_u32 v3, s18, v3')
    a(f'ds_write_b32 v3, v{S1}'); a(f'ds_write_b32 v3, v{S2} offset:256'); a(f'ds_write_b32 v3, v{S3} offset:512')
    a('s_lshl_b32 s18, s10, 8'); a('s_add_u32 s18, s18, 131072'); a('v_lshlrev_b32 v4, 2, v1'); a('v_add_u32 v5, s18, v4')
    a('s_lshl_b32 s18, s10, 13'); a('s_lshl_b32 s19, s8, 8'); a('s_add_u32 s18, s18, s19'); a(f's_add_u32 s18, s18, {WS_ST}')
    a('s_add_u32 s4, s4, s18'); a('s_addc_u32 s5, s5, 0')
    a('s_waitcnt lgkmcnt(0)'); a('s_barrier')
    a('s_cmp_ge_u32 s10, 3'); a('s_cbranch_scc1 K2_END')
    a('ds_read_b32 v6, v5'); a('ds_read_b32 v7, v5 offset:768')
    a('s_waitcnt lgkmcnt(0)')
    a('v_add_f32 v6, v6, v7')
    a('global_atomic_add_f32 v4, v6, s[4:5]')
```

```python
from common import *
NMOE=86
def rowstats(a,s1,s2,mean,rstd,t):
    a(f'v_mul_f32 v{mean}, {hx(1.0/512)}, v{s1}')
    a(f'v_mul_f32 v{t}, v{mean}, v{mean}'); a(f'v_mul_f32 v{rstd}, {hx(1.0/512)}, v{s2}'); a(f'v_sub_f32 v{rstd}, v{rstd}, v{t}')
    a(f'v_max_f32 v{rstd}, 0, v{rstd}'); a(f'v_add_f32 v{rstd}, {hx(1e-5)}, v{rstd}'); a(f'v_rsq_f32 v{rstd}, v{rstd}')
def h2calc(a,F,n,mean,rstd,CB,SB,T):
    for d in range(0,n,2): a(f'v_pk_add_f32 {vr(F+d,2)}, {vr(F+d,2)}, {vr(mean,2)} op_sel_hi:[1,0] neg_lo:[0,1] neg_hi:[0,1]')
    for d in range(0,n,2): a(f'v_pk_mul_f32 {vr(F+d,2)}, {vr(F+d,2)}, {vr(rstd,2)} op_sel_hi:[1,0]')
    def rnd():
        for d in range(0,n,2): a(f'v_cvt_pk_bf16_f32 v{T+d//2}, v{F+d}, v{F+d+1}')
        for d in range(0,n,2): unpack(a,F+d,F+d+1,T+d//2)
    rnd()
    for d in range(0,n,2): a(f'v_pk_mul_f32 {vr(F+d,2)}, {vr(F+d,2)}, {vr(CB+d,2)}')
    rnd()
    for d in range(0,n,2): a(f'v_pk_add_f32 {vr(F+d,2)}, {vr(F+d,2)}, {vr(SB+d,2)}')
    rnd()
def top2step(a,k1,k2,b1,b2,lo):
    a(f'v_min_u32 v{lo}, v{k1}, v{b1}'); a(f'v_max_u32 v{k1}, v{k1}, v{b1}'); a(f'v_max3_u32 v{k2}, v{lo}, v{k2}, v{b2}')
def k4(a):
    a.label('k4_kernel')
    a(f's_cmp_ge_u32 s2, {NMOE+128}'); a('s_cbranch_scc1 K4_END')
    ldarg(a,4,'ws')
    a(f's_cmp_ge_u32 s2, {NMOE}'); a('s_cbranch_scc1 K4_OUT')
    ldarg(a,6,'wg'); ldarg(a,8,'wu'); ldarg(a,10,'wr')
    a('v_lshrrev_b32 v1, 2, v0'); a('v_mul_u32_u24 v1, 2752, v1'); a('v_and_b32 v2, 1, v0'); a('v_lshlrev_b32 v2, 4, v2'); a('v_add_u32 v1, v1, v2')
    a('s_lshl_b32 s12, s2, 5'); a('v_add_u32 v1, s12, v1')
    a('v_lshlrev_b32 v3, 5, v0')
    a('v_lshlrev_b32 v4, 3, v0')
    a('v_lshlrev_b32 v5, 2, v0')
    a('s_waitcnt lgkmcnt(0)'); a(';TS1')
    addc(a,14,4,WS_ST); addc(a,16,4,WS_ST+8192); addc(a,18,4,WS_ST+16384); addc(a,20,4,WS_MOD)
    ST=16
    a('global_load_dwordx2 v[40:41], v4, s[20:21] offset:2048')
    a('v_add_u32 v6, 4096, v4')
    a('global_load_dwordx2 v[42:43], v6, s[20:21]')
    a('v_add_u32 v7, 8192, v4')
    a('global_load_dwordx2 v[44:45], v7, s[20:21]')
    a('global_load_dword v46, v5, s[10:11]')
    for s in range(3):
        a(f'global_load_dwordx4 {vr(ST+8*s,4)}, v3, s[{14+2*s}:{15+2*s}]'); a(f'global_load_dwordx4 {vr(ST+8*s+4,4)}, v3, s[{14+2*s}:{15+2*s}] offset:16')
    a('v_and_b32 v2, 2, v0'); a('v_cmp_eq_u32 vcc, 0, v2')
    a('v_mov_b32 v8, s8'); a('v_mov_b32 v9, s9'); a('v_mov_b32 v10, s6'); a('v_mov_b32 v11, s7')
    a('v_cndmask_b32 v8, v8, v10, vcc'); a('v_cndmask_b32 v9, v9, v11, vcc')
    a('v_add_co_u32 v8, vcc, v8, v1'); a('v_addc_co_u32 v9, vcc, 0, v9, vcc')
    W=64
    for i in range(8):
        a(f'global_load_dwordx4 {vr(W+4*i,4)}, v[8:9], off')
        if i<7: a(f'v_add_co_u32 v8, vcc, {64*2752}, v8'); a('v_addc_co_u32 v9, vcc, 0, v9, vcc')
    a('s_waitcnt vmcnt(14)'); a(';TS2')
    unpack(a,47,48,46)
    a('v_mul_f32 v47, v47, v40'); a('v_fmac_f32 v47, v48, v41')
    a('v_add_f32 v48, v44, v45')
    for v in (47,48):
        for c in ('quad_perm:[1,0,3,2]','quad_perm:[2,3,0,1]','row_half_mirror','row_mirror'): dppadd(a,v,c)
        a(f'v_mov_b32 v49, v{v}'); a(f'v_permlane16_swap_b32 v{v}, v49'); a(f'v_add_f32 v{v}, v{v}, v49')
        halfsum(a,v,49)
    a('v_lshrrev_b32 v12, 6, v0'); a('v_lshlrev_b32 v13, 3, v12')
    a('ds_write_b64 v13, v[47:48]' if False else 'v_mov_b32 v50, v47'); a('v_mov_b32 v51, v48')
    a('ds_write_b64 v13, v[50:51]')
    a('ds_write_b64 v4, v[40:41] offset:1024'); a('ds_write_b64 v4, v[42:43] offset:3072')
    a('v_mov_b32 v13, 0')
    a('s_waitcnt lgkmcnt(0)'); a('s_barrier')
    a('ds_read_b128 v[52:55], v13'); a('ds_read_b128 v[56:59], v13 offset:16')
    a('s_waitcnt lgkmcnt(0)')
    a('v_add_f32 v52, v52, v54'); a('v_add_f32 v56, v56, v58'); a('v_add_f32 v52, v52, v56')
    a('v_add_f32 v53, v53, v55'); a('v_add_f32 v57, v57, v59'); a('v_add_f32 v53, v53, v57')
    K1,K2=54,55
    a('s_waitcnt vmcnt(8)')
    a(f'v_mov_b32 v{K1}, 0'); a(f'v_mov_b32 v{K2}, 0')
    a('v_lshlrev_b32 v12, 3, v0'); a('v_sub_u32 v12, 0x7ff, v12')
    for i in range(8):
        m,rs,t=56,57,58
        rowstats(a,ST+i,ST+8+i,m,rs,t)
        a(f'v_fma_f32 v{t}, -v{m}, v53, v{ST+16+i}'); a(f'v_fma_f32 v{t}, v{rs}, v{t}, v52')
        a(f'v_cvt_pk_bf16_f32 v{t}, v{t}, v{t}'); a(f'v_and_b32 v{t}, 0xffff, v{t}')
        a(f'v_bfe_i32 v59, v{t}, 15, 1'); a('v_or_b32 v59, 0x8000, v59'); a(f'v_xor_b32 v{t}, v{t}, v59'); a(f'v_lshlrev_b32 v{t}, 16, v{t}')
        a(f'v_subrev_u32 v59, {i}, v12'); a(f'v_or_b32 v{t}, v{t}, v59')
        a(f'v_med3_u32 v{K2}, v{K1}, v{K2}, v{t}'); a(f'v_max_u32 v{K1}, v{K1}, v{t}')
    for c in ('quad_perm:[1,0,3,2]','quad_perm:[2,3,0,1]','row_half_mirror','row_mirror'):
        a(f'v_mov_b32_dpp v56, v{K1} {c} row_mask:0xf bank_mask:0xf'); a(f'v_mov_b32_dpp v57, v{K2} {c} row_mask:0xf bank_mask:0xf')
        top2step(a,K1,K2,56,57,58)
    for sw in ('v_permlane16_swap_b32','v_permlane32_swap_b32'):
        a(f'v_mov_b32 v56, v{K1}'); a(f'v_mov_b32 v57, v{K2}'); a(f'{sw} v{K1}, v56'); a(f'{sw} v{K2}, v57')
        top2step(a,K1,K2,56,57,58)
    a('v_lshrrev_b32 v12, 6, v0'); a('v_lshlrev_b32 v13, 3, v12')
    a(f'ds_write_b64 v13, v[{K1}:{K2}] offset:64')
    a('v_mov_b32 v13, 0')
    a('s_waitcnt lgkmcnt(0)'); a('s_barrier')
    a('ds_read_b128 v[56:59], v13 offset:64'); a('ds_read_b128 v[60:63], v13 offset:80')
    a('s_waitcnt lgkmcnt(0)')
    a(';TS3'); top2step(a,56,57,58,59,12); top2step(a,60,61,62,63,12); top2step(a,56,57,60,61,12)
    a('v_readfirstlane_b32 s22, v56'); a('v_readfirstlane_b32 s23, v57'); a('v_readfirstlane_b32 s24, v0')
    a('s_lshr_b32 s24, s24, 6')
    a('s_and_b32 s25, s22, 0x7ff'); a('s_sub_u32 s25, 0x7ff, s25'); a('s_and_b32 s26, s23, 0x7ff'); a('s_sub_u32 s26, 0x7ff, s26')
    a('s_cmp_ge_u32 s24, 2'); a('s_cbranch_scc1 K4_PUB')
    a('s_cmp_eq_u32 s24, 0'); a('s_cselect_b32 s27, s25, s26'); a('s_cselect_b32 s28, s22, s23')
    a('v_and_b32 v12, 63, v0'); a('v_lshlrev_b32 v13, 4, v12')
    a('s_lshl_b32 s29, s27, 10'); a(f's_add_u32 s29, s29, {WS_X1}'); a('s_add_u32 s30, s4, s29'); a('s_addc_u32 s31, s5, 0')
    a('global_load_dwordx4 v[16:19], v13, s[30:31]')
    a('s_lshl_b32 s29, s27, 2'); a('v_mov_b32 v14, s29')
    a('global_load_dword v20, v14, s[14:15]'); a('global_load_dword v21, v14, s[16:17]')
    a('v_lshlrev_b32 v14, 5, v12')
    a('ds_read_b128 v[32:35], v14 offset:1024'); a('ds_read_b128 v[36:39], v14 offset:1040')
    a('ds_read_b128 v[40:43], v14 offset:3072'); a('ds_read_b128 v[44:47], v14 offset:3088')
    a('s_waitcnt vmcnt(0) lgkmcnt(0)')
    rowstats(a,20,21,22,24,23)
    for d in range(4): unpack(a,48+2*d,49+2*d,16+d)
    h2calc(a,48,8,22,24,40,32,26)
    a('s_lshl_b32 s29, s24, 2'); a('v_lshlrev_b32 v15, 6, v12'); a('v_add_u32 v15, s29, v15')
    for d in range(8): a(f'ds_write_b32 v15, v{48+d} offset:{8192+8*d}')
    a('s_branch K4_H2DONE')
    a.label('K4_PUB')
    a('s_cmp_ge_u32 s2, 32'); a('s_cbranch_scc1 K4_H2DONE')
    a('s_cmp_eq_u32 s24, 2'); a('s_cselect_b32 s27, s25, s26'); a('s_cselect_b32 s28, s22, s23')
    a('s_lshr_b32 s28, s28, 16'); a('s_and_b32 s29, s28, 0x8000'); a('s_cmp_lg_u32 s29, 0'); a('s_mov_b32 s33, 0xffff'); a('s_cselect_b32 s29, 0x8000, s33'); a('s_xor_b32 s28, s28, s29'); a('s_lshl_b32 s28, s28, 16')
    a('v_mov_b32 v60, s28'); a(f'v_mul_f32 v60, {hx(-LOG2E)}, v60'); a('v_exp_f32 v60, v60'); a('v_add_f32 v60, 1.0, v60'); a('v_rcp_f32 v60, v60'); bf16r(a,60,60)
    a('v_or_b32 v61, 1, v60'); a('s_add_u32 s29, s27, 1'); a('v_mov_b32 v60, s29')
    a('s_and_b32 s29, s24, 1'); a('s_lshl_b32 s29, s29, 3'); a('s_lshl_b32 s33, s2, 7'); a('s_add_u32 s29, s29, s33'); a('v_mov_b32 v62, s29'); addc(a,34,4,WS_SEL)
    a('s_mov_b64 exec, 1')
    a('global_store_dwordx2 v62, v[60:61], s[34:35] sc1')
    a('s_mov_b64 exec, -1')
    a.label('K4_H2DONE')
    a('s_waitcnt lgkmcnt(0)'); a('s_barrier'); a(';TS4')
    a('v_lshrrev_b32 v12, 2, v0'); a('v_lshlrev_b32 v12, 3, v12')
    H=16
    for i in range(8): a(f'ds_read_b64 {vr(H+2*i,2)}, v12 offset:{8192+512*i}')
    ACC=32
    for i in range(16): a(f'v_mov_b32 v{ACC+i}, 0')
    a('s_waitcnt vmcnt(0) lgkmcnt(0)'); a(';TS5')
    for i in range(8):
        for d in range(4):
            t=48+2*d
            unpack(a,t,t+1,W+4*i+d)
            a(f'v_pk_fma_f32 {vr(ACC+4*d,2)}, {vr(t,2)}, {vr(H+2*i,2)}, {vr(ACC+4*d,2)} op_sel_hi:[0,1,1]')
            a(f'v_pk_fma_f32 {vr(ACC+4*d+2,2)}, {vr(t,2)}, {vr(H+2*i,2)}, {vr(ACC+4*d+2,2)} op_sel:[1,0,0] op_sel_hi:[1,1,1]')
    for c in ('row_ror:4','row_ror:8'):
        for i in range(16): dppadd(a,ACC+i,c)
    a('v_lshrrev_b32 v12, 4, v0'); a('v_lshlrev_b32 v12, 8, v12'); a('v_and_b32 v13, 3, v0'); a('v_lshlrev_b32 v13, 6, v13'); a('v_add_u32 v12, v12, v13')
    a('s_mov_b32 s16, 0x000f000f'); a('s_mov_b32 s17, 0x000f000f'); a('s_mov_b64 exec, s[16:17]')
    for i in range(4): a(f'ds_write_b128 v12, {vr(ACC+4*i,4)} offset:{16384+16*i}')
    a('s_mov_b64 exec, -1')
    a('s_waitcnt lgkmcnt(0)'); a('s_barrier')
    a('s_cmp_ge_u32 s24, 1'); a('s_cbranch_scc1 K4_END')
    a('v_lshlrev_b32 v12, 2, v0')
    for i in range(16): a(f'ds_read_b32 v{16+i}, v12 offset:{16384+256*i}')
    a('s_waitcnt lgkmcnt(0)')
    for st in (8,4,2,1):
        for i in range(st): a(f'v_add_f32 v{16+i}, v{16+i}, v{16+i+st}')
    bf16r(a,16,16)
    a('v_mov_b32 v17, v16'); a('v_permlane32_swap_b32 v16, v17')
    a(f's_mov_b32 s20, {hx(-LOG2E)}')
    silu(a,18,16,19,20); bf16r(a,18,18); a('v_mul_f32 v18, v18, v17'); bf16r(a,18,18)
    a('s_lshl_b32 s12, s2, 7'); a(f's_add_u32 s12, s12, {WS_ACT}'); a('s_add_u32 s4, s4, s12'); a('s_addc_u32 s5, s5, 0')
    a('s_mov_b32 exec_hi, 0')
    a('v_or_b32 v18, 1, v18')
    a('global_store_dword v12, v18, s[4:5] sc1')
    a('s_endpgm')
    a.label('K4_OUT')
    ldarg(a,6,'out')
    a(f's_sub_u32 s12, s2, {NMOE}')
    a('v_and_b32 v1, 63, v0'); a('v_lshrrev_b32 v2, 6, v0')
    a('s_lshl_b32 s13, s12, 4'); a('v_add_u32 v2, s13, v2')
    a('v_lshlrev_b32 v3, 10, v2'); a('v_lshlrev_b32 v4, 4, v1'); a('v_add_u32 v3, v3, v4'); a('v_add_u32 v7, 4096, v3')
    a('v_lshlrev_b32 v5, 2, v2'); a('v_lshlrev_b32 v6, 5, v1')
    a('s_waitcnt lgkmcnt(0)')
    addc(a,8,4,WS_X1); addc(a,14,4,WS_ST); addc(a,16,4,WS_ST+8192); addc(a,20,4,WS_MOD+2048); addc(a,22,4,WS_MOD+6144)
    X=16
    WD=104
    a(f's_mul_i32 s13, s12, {WDS}'); a(f's_add_u32 s13, s13, {WS_WD}'); a('s_add_u32 s24, s4, s13'); a('s_addc_u32 s25, s5, 0'); a(f's_mov_b32 s26, {WDS}'); a('s_mov_b32 s27, 0x00020000')
    a('v_lshlrev_b32 v10, 4, v0')
    a('v_add_u32 v8, 0x2000, v3'); a('v_add_u32 v9, 0x3000, v3')
    offs=[3,7,8,9]
    for i in range(4): a(f'global_load_dwordx4 {vr(X+4*i,4)}, v{offs[i]}, s[8:9]')
    for i in range(4):
        a(f'global_load_dword v{32+i}, v5, s[14:15] offset:{16*i}'); a(f'global_load_dword v{36+i}, v5, s[16:17] offset:{16*i}')
    SB=40; CB=48; GB=56
    a(f'global_load_dwordx4 {vr(SB,4)}, v6, s[20:21]'); a(f'global_load_dwordx4 {vr(SB+4,4)}, v6, s[20:21] offset:16')
    a(f'global_load_dwordx4 {vr(CB,4)}, v6, s[20:21] offset:2048'); a(f'global_load_dwordx4 {vr(CB+4,4)}, v6, s[20:21] offset:2064')
    a(f'global_load_dwordx4 {vr(GB,4)}, v6, s[22:23]'); a(f'global_load_dwordx4 {vr(GB+4,4)}, v6, s[22:23] offset:16')
    a('v_bfe_u32 v11, v0, 1, 2'); a('s_lshl_b32 s13, s12, 2'); a('v_add_u32 v11, s13, v11'); a('v_lshlrev_b32 v11, 2, v11')
    a('global_load_dword v116, v11, s[20:21]'); a('global_load_dword v117, v11, s[20:21] offset:2048'); a('global_load_dword v118, v11, s[22:23]')
    a(';TS1'); a('s_waitcnt vmcnt(3)'); a(';TS2')
    for i in range(4):
        F=64; XF=72; T=80
        rowstats(a,32+i,36+i,84,86,85)
        for d in range(4): unpack(a,F+2*d,F+2*d+1,X+4*i+d)
        for d in range(8): a(f'v_mov_b32 v{XF+d}, v{F+d}')
        h2calc(a,F,8,84,86,CB,SB,T)
        for d in range(0,8,2): a(f'v_pk_mul_f32 {vr(F+d,2)}, {vr(F+d,2)}, {vr(GB+d,2)}')
        for d in range(4): a(f'v_cvt_pk_bf16_f32 v{T+d}, v{F+2*d}, v{F+2*d+1}')
        for d in range(4): unpack(a,F+2*d,F+2*d+1,T+d)
        for d in range(0,8,2): a(f'v_pk_add_f32 {vr(F+d,2)}, {vr(F+d,2)}, {vr(XF+d,2)}')
        for d in range(4): a(f'v_cvt_pk_bf16_f32 v{88+4*i+d}, v{F+2*d}, v{F+2*d+1}')
    a(';TS3')
    for i in range(3): a(f'buffer_load_dwordx4 {vr(WD+4*i,4)}, v10, s[24:27], 0 offen' + (f' offset:0' if i==0 else '')); a('v_add_u32 v10, 4096, v10')
    addc(a,28,4,WS_SEL); a('s_and_b32 s30, s12, 31'); a('s_lshl_b32 s30, s30, 7'); a('v_mov_b32 v12, s30')
    a.label('K4_PS')
    a('global_load_dwordx4 v[120:123], v12, s[28:29] sc1')
    a('s_waitcnt vmcnt(0)')
    a('v_min_u32 v13, v120, v121'); a('v_min3_u32 v13, v13, v122, v123')
    a('v_readfirstlane_b32 s30, v13'); a('s_cmp_eq_u32 s30, 0'); a('s_cbranch_scc1 K4_PS')
    a('v_readfirstlane_b32 s30, v120'); a('v_readfirstlane_b32 s31, v122'); a('s_sub_u32 s30, s30, 1'); a('s_sub_u32 s31, s31, 1')
    a(';TS4')
    a('v_and_b32 v13, 1, v0'); a('v_cmp_eq_u32 vcc, 0, v13'); a('v_mov_b32 v14, s31'); a('v_mov_b32 v15, s30'); a('v_cndmask_b32 v14, v14, v15, vcc')
    a('v_cndmask_b32 v119, v123, v121, vcc'); a('v_and_b32 v119, 0xffff0000, v119')
    a('v_lshlrev_b32 v15, 10, v14'); a('v_lshrrev_b32 v11, 1, v11'); a('v_add_u32 v11, v15, v11')
    a('v_lshlrev_b32 v14, 2, v14')
    a('global_load_ushort v124, v11, s[8:9]'); a('global_load_dword v125, v14, s[14:15]'); a('global_load_dword v126, v14, s[16:17]')
    a('v_readfirstlane_b32 s33, v2')
    for i in range(4):
        a('s_cmp_eq_u32 s33, s30'); a(f's_cbranch_scc1 K4_SK{i}'); a('s_cmp_eq_u32 s33, s31'); a(f's_cbranch_scc1 K4_SK{i}')
        a(f'global_store_dwordx4 v{offs[i]}, {vr(88+4*i,4)}, s[6:7]')
        a.label(f'K4_SK{i}')
        if i<3: a('s_add_u32 s33, s33, 4')
    addc(a,34,4,WS_ACT)
    a('v_lshlrev_b32 v12, 4, v0'); a('v_add_u32 v13, 4096, v12'); a('v_add_u32 v14, 8192, v12'); a(f'v_min_u32 v14, {687*16}, v14')
    A=16
    a('v_readfirstlane_b32 s38, v0'); a('s_lshr_b32 s38, s38, 6'); a('s_lshl_b32 s39, s12, 2'); a('s_add_u32 s38, s38, s39')
    a('s_mul_i32 s39, s38, 763'); a('s_lshr_b32 s39, s39, 16'); a('s_mul_i32 s39, s39, 86'); a('s_sub_u32 s38, s38, s39')
    a('s_lshl_b32 s38, s38, 7'); a('v_mov_b32 v15, s38')
    a.label('K4_P1')
    a('global_load_dword v28, v15, s[34:35] sc1'); a('s_waitcnt vmcnt(0)')
    a('v_readfirstlane_b32 s38, v28'); a('s_cmp_eq_u32 s38, 0'); a('s_cbranch_scc1 K4_P1')
    a.label('K4_PA')
    for i in range(3): a(f'global_load_dwordx4 {vr(A+4*i,4)}, v{12+i}, s[34:35] sc1')
    a('s_waitcnt vmcnt(0)')
    a(f'v_and_b32 v15, v{A}, v{A+1}')
    for i in range(2,12,2): a(f'v_and_b32 v28, v{A+i}, v{A+i+1}'); a('v_and_b32 v15, v15, v28')
    a('v_and_b32 v15, 1, v15'); a('v_cmp_eq_u32 vcc, 0, v15'); a('s_cbranch_vccnz K4_PA')
    a(';TS5')
    ACC=32
    for i in range(3):
        for r in range(2):
            for d in range(2):
                t=40+4*r+2*d
                unpack(a,t,t+1,WD+4*i+2*r+d)
        for r in range(2):
            for d in range(2):
                t=40+4*r+2*d; h=vr(A+4*i+2*r,2)
                for e in range(2):
                    ac=vr(ACC+4*d+2*e,2); sel='op_sel_hi:[0,1]' if e==0 else 'op_sel:[1,0] op_sel_hi:[1,1]'
                    if i==0 and r==0: a(f'v_pk_mul_f32 {ac}, {vr(t,2)}, {h} {sel}')
                    else:
                        sel='op_sel_hi:[0,1,1]' if e==0 else 'op_sel:[1,0,0] op_sel_hi:[1,1,1]'
                        a(f'v_pk_fma_f32 {ac}, {vr(t,2)}, {h}, {ac} {sel}')
    for c in ('quad_perm:[1,0,3,2]','quad_perm:[2,3,0,1]','row_half_mirror','row_mirror'):
        for i in range(8): dppadd(a,ACC+i,c)
    a('v_lshrrev_b32 v12, 4, v0'); a('v_lshlrev_b32 v12, 5, v12')
    a('s_mov_b32 s36, 0x00010001'); a('s_mov_b32 s37, 0x00010001'); a('s_mov_b64 exec, s[36:37]')
    a(f'ds_write_b128 v12, {vr(ACC,4)}'); a(f'ds_write_b128 v12, {vr(ACC+4,4)} offset:16')
    a('s_mov_b64 exec, -1')
    rowstats(a,125,126,44,46,45)
    a('v_lshlrev_b32 v124, 16, v124'); a('v_sub_f32 v47, v124, v44'); a('v_mul_f32 v47, v47, v46'); bf16r(a,47,47)
    a('v_mul_f32 v47, v47, v117'); bf16r(a,47,47); a('v_add_f32 v47, v47, v116'); bf16r(a,47,47)
    a('s_waitcnt lgkmcnt(0)'); a('s_barrier')
    a('v_readfirstlane_b32 s14, v0'); a('s_cmp_ge_u32 s14, 64'); a('s_cbranch_scc1 K4_END')
    a('v_lshlrev_b32 v12, 2, v0')
    a('ds_read_b32 v16, v12'); a('ds_read_b32 v17, v12 offset:256')
    a('s_waitcnt lgkmcnt(0)')
    a('v_add_f32 v16, v16, v17'); dppadd(a,16,'row_ror:8')
    a('v_mov_b32 v17, v16'); a('v_permlane16_swap_b32 v16, v17'); a('v_add_f32 v16, v16, v17')
    halfsum(a,16,17)
    bf16r(a,16,16); a('v_mul_f32 v16, v16, v119'); bf16r(a,16,16)
    a('v_add_f32 v16, v16, v47'); bf16r(a,16,16); a('v_mul_f32 v16, v16, v118'); bf16r(a,16,16)
    a('v_add_f32 v16, v16, v124'); a('v_cvt_pk_bf16_f32 v16, v16, v16')
    a('s_mov_b64 exec, 0xff')
    a('global_store_short v11, v16, s[6:7]')
    a.label('K4_END'); a('s_endpgm')

def k5(a):
    a.label('k5_kernel')
    a('s_cmp_ge_u32 s2, 32'); a('s_cbranch_scc1 K5_END')
    ldarg(a,4,'ws'); ldarg(a,6,'wd'); ldarg(a,16,'out')
    a('v_lshrrev_b32 v1, 1, v0'); a('v_and_b32 v2, 1, v0')
    a('v_lshlrev_b32 v3, 10, v1'); a('v_lshlrev_b32 v4, 4, v2'); a('v_add_u32 v3, v3, v4'); a('s_lshl_b32 s12, s2, 5'); a('v_add_u32 v3, s12, v3')
    a('v_lshlrev_b32 v5, 3, v1')
    a('s_waitcnt lgkmcnt(0)')
    a(';TS1'); a('s_mov_b32 s8, s6'); a('s_mov_b32 s9, s7'); a(f's_mov_b32 s10, {1376*1024}'); a('s_mov_b32 s11, 0x00020000')
    a(f's_add_u32 s20, s4, {WS_ACT}'); a('s_addc_u32 s21, s5, 0'); a(f's_mov_b32 s22, {1376*8}'); a('s_mov_b32 s23, 0x00020000')
    W=16; H=48
    for i in range(6):
        a(f'buffer_load_dwordx4 {vr(W+4*i,4)}, v3, s[8:11], 0 offen')
        if i<5: a('v_add_u32 v3, 0x40000, v3')
    for i in range(6): a(f'buffer_load_dwordx2 {vr(H+2*i,2)}, v5, s[20:23], 0 offen offset:{0}'); a('v_add_u32 v5, 2048, v5')
    addc(a,24,4,WS_SEL)
    a('v_and_b32 v6, 31, v0'); a('v_lshrrev_b32 v7, 4, v6'); a('v_and_b32 v8, 15, v0'); a('s_lshl_b32 s13, s2, 4'); a('v_add_u32 v8, s13, v8')
    a('v_lshlrev_b32 v9, 3, v7')
    a('global_load_dwordx2 v[10:11], v9, s[24:25]')
    a('v_lshlrev_b32 v9, 11, v7'); a('v_lshlrev_b32 v12, 2, v8'); a('v_add_u32 v9, v9, v12')
    a('global_load_dword v13, v9, s[24:25] offset:64')
    addc(a,26,4,WS_MOD+6144)
    a('global_load_dword v14, v12, s[26:27]')
    ACC=64
    for i in range(16): a(f'v_mov_b32 v{ACC+i}, 0')
    a('s_waitcnt vmcnt(2)'); a(';TS2')
    a('v_lshlrev_b32 v9, 10, v10'); a('v_lshlrev_b32 v12, 1, v8'); a('v_add_u32 v9, v9, v12')
    addc(a,28,4,WS_X1)
    a('global_load_ushort v15, v9, s[28:29]')
    for i in range(6):
        for d in range(4):
            t=80+2*d
            unpack(a,t,t+1,W+4*i+d)
            a(f'v_pk_fma_f32 {vr(ACC+4*d,2)}, {vr(t,2)}, {vr(H+2*i,2)}, {vr(ACC+4*d,2)} op_sel_hi:[0,1,1]')
            a(f'v_pk_fma_f32 {vr(ACC+4*d+2,2)}, {vr(t,2)}, {vr(H+2*i,2)}, {vr(ACC+4*d+2,2)} op_sel:[1,0,0] op_sel_hi:[1,1,1]')
    for c in ('quad_perm:[2,3,0,1]','row_ror:4','row_ror:8'):
        for i in range(16): dppadd(a,ACC+i,c)
    a('v_lshrrev_b32 v12, 4, v0'); a('v_lshlrev_b32 v12, 7, v12'); a('v_lshlrev_b32 v2, 6, v2'); a('v_add_u32 v12, v12, v2')
    a('s_mov_b32 s14, 0x00030003'); a('s_mov_b32 s15, 0x00030003'); a('s_mov_b64 exec, s[14:15]')
    for i in range(4): a(f'ds_write_b128 v12, {vr(ACC+4*i,4)} offset:{16*i}')
    a('s_mov_b64 exec, -1')
    a('s_waitcnt lgkmcnt(0)'); a('s_barrier')
    a(';TS3'); a('v_readfirstlane_b32 s14, v0'); a('s_cmp_ge_u32 s14, 64'); a('s_cbranch_scc1 K5_END')
    a('v_and_b32 v12, 15, v0'); a('v_lshrrev_b32 v2, 3, v12'); a('v_lshlrev_b32 v2, 6, v2'); a('v_and_b32 v12, 7, v12'); a('v_lshlrev_b32 v12, 3, v12'); a('v_add_u32 v12, v12, v2')
    a('v_lshlrev_b32 v2, 2, v7'); a('v_add_u32 v12, v12, v2'); a('v_lshrrev_b32 v2, 5, v0'); a('v_lshlrev_b32 v2, 11, v2'); a('v_add_u32 v12, v12, v2')
    for i in range(16): a(f'ds_read_b32 v{16+i}, v12 offset:{128*i}')
    a('s_waitcnt lgkmcnt(0)')
    for st in (8,4,2,1):
        for i in range(st): a(f'v_add_f32 v{16+i}, v{16+i}, v{16+i+st}')
    halfsum(a,16,17)
    a('s_waitcnt vmcnt(0)')
    bf16r(a,16,16); a('v_mul_f32 v16, v16, v11'); bf16r(a,16,16)
    a('v_add_f32 v16, v16, v13'); bf16r(a,16,16); a('v_mul_f32 v16, v16, v14'); bf16r(a,16,16)
    a('v_lshlrev_b32 v15, 16, v15'); a('v_add_f32 v16, v16, v15'); a('v_cvt_pk_bf16_f32 v16, v16, v16')
    a('s_mov_b32 exec_hi, 0')
    a('global_store_short v9, v16, s[16:17]')
    a.label('K5_END'); a('s_endpgm')
```

```python
from common import *
NMOE=86
def rowstats(a,s1,s2,mean,rstd,t):
    a(f'v_mul_f32 v{mean}, {hx(1.0/512)}, v{s1}')
    a(f'v_mul_f32 v{t}, v{mean}, v{mean}'); a(f'v_mul_f32 v{rstd}, {hx(1.0/512)}, v{s2}'); a(f'v_sub_f32 v{rstd}, v{rstd}, v{t}')
    a(f'v_max_f32 v{rstd}, 0, v{rstd}'); a(f'v_add_f32 v{rstd}, {hx(1e-5)}, v{rstd}'); a(f'v_rsq_f32 v{rstd}, v{rstd}')
def h2calc(a,F,n,mean,rstd,CB,SB,T):
    for d in range(0,n,2): a(f'v_pk_add_f32 {vr(F+d,2)}, {vr(F+d,2)}, {vr(mean,2)} op_sel_hi:[1,0] neg_lo:[0,1] neg_hi:[0,1]')
    for d in range(0,n,2): a(f'v_pk_mul_f32 {vr(F+d,2)}, {vr(F+d,2)}, {vr(rstd,2)} op_sel_hi:[1,0]')
    def rnd():
        for d in range(0,n,2): a(f'v_cvt_pk_bf16_f32 v{T+d//2}, v{F+d}, v{F+d+1}')
        for d in range(0,n,2): unpack(a,F+d,F+d+1,T+d//2)
    rnd()
    for d in range(0,n,2): a(f'v_pk_mul_f32 {vr(F+d,2)}, {vr(F+d,2)}, {vr(CB+d,2)}')
    rnd()
    for d in range(0,n,2): a(f'v_pk_add_f32 {vr(F+d,2)}, {vr(F+d,2)}, {vr(SB+d,2)}')
    rnd()
def top2step(a,k1,k2,b1,b2,lo):
    a(f'v_min_u32 v{lo}, v{k1}, v{b1}'); a(f'v_max_u32 v{k1}, v{k1}, v{b1}'); a(f'v_max3_u32 v{k2}, v{lo}, v{k2}, v{b2}')
def k4(a):
    a.label('k4_kernel')
    a(f's_cmp_ge_u32 s2, {NMOE+128}'); a('s_cbranch_scc1 K4_END')
    ldarg(a,4,'ws')
    a(f's_cmp_ge_u32 s2, {NMOE}'); a('s_cbranch_scc1 K4_OUT')
    ldarg(a,6,'wg'); ldarg(a,8,'wu'); ldarg(a,10,'wr')
    a('v_lshrrev_b32 v1, 2, v0'); a('v_mul_u32_u24 v1, 2752, v1'); a('v_and_b32 v2, 1, v0'); a('v_lshlrev_b32 v2, 4, v2'); a('v_add_u32 v1, v1, v2')
    a('s_lshl_b32 s12, s2, 5'); a('v_add_u32 v1, s12, v1')
    a('v_lshlrev_b32 v3, 5, v0')
    a('v_lshlrev_b32 v4, 3, v0')
    a('v_lshlrev_b32 v5, 2, v0')
    a('s_waitcnt lgkmcnt(0)'); a(';TS1')
    addc(a,14,4,WS_ST); addc(a,16,4,WS_ST+8192); addc(a,18,4,WS_ST+16384); addc(a,20,4,WS_MOD)
    ST=16
    a('global_load_dwordx2 v[40:41], v4, s[20:21] offset:2048')
    a('v_add_u32 v6, 4096, v4')
    a('global_load_dwordx2 v[42:43], v6, s[20:21]')
    a('v_add_u32 v7, 8192, v4')
    a('global_load_dwordx2 v[44:45], v7, s[20:21]')
    a('global_load_dword v46, v5, s[10:11]')
    for s in range(3):
        a(f'global_load_dwordx4 {vr(ST+8*s,4)}, v3, s[{14+2*s}:{15+2*s}]'); a(f'global_load_dwordx4 {vr(ST+8*s+4,4)}, v3, s[{14+2*s}:{15+2*s}] offset:16')
    a('v_and_b32 v2, 2, v0'); a('v_cmp_eq_u32 vcc, 0, v2')
    a('v_mov_b32 v8, s8'); a('v_mov_b32 v9, s9'); a('v_mov_b32 v10, s6'); a('v_mov_b32 v11, s7')
    a('v_cndmask_b32 v8, v8, v10, vcc'); a('v_cndmask_b32 v9, v9, v11, vcc')
    a('v_add_co_u32 v8, vcc, v8, v1'); a('v_addc_co_u32 v9, vcc, 0, v9, vcc')
    W=64
    for i in range(8):
        a(f'global_load_dwordx4 {vr(W+4*i,4)}, v[8:9], off')
        if i<7: a(f'v_add_co_u32 v8, vcc, {64*2752}, v8'); a('v_addc_co_u32 v9, vcc, 0, v9, vcc')
    a('s_waitcnt vmcnt(14)'); a(';TS2')
    unpack(a,47,48,46)
    a('v_mul_f32 v47, v47, v40'); a('v_fmac_f32 v47, v48, v41')
    a('v_add_f32 v48, v44, v45')
    for v in (47,48):
        for c in ('quad_perm:[1,0,3,2]','quad_perm:[2,3,0,1]','row_half_mirror','row_mirror'): dppadd(a,v,c)
        a(f'v_mov_b32 v49, v{v}'); a(f'v_permlane16_swap_b32 v{v}, v49'); a(f'v_add_f32 v{v}, v{v}, v49')
        halfsum(a,v,49)
    a('v_lshrrev_b32 v12, 6, v0'); a('v_lshlrev_b32 v13, 3, v12')
    a('ds_write_b64 v13, v[47:48]' if False else 'v_mov_b32 v50, v47'); a('v_mov_b32 v51, v48')
    a('ds_write_b64 v13, v[50:51]')
    a('ds_write_b64 v4, v[40:41] offset:1024'); a('ds_write_b64 v4, v[42:43] offset:3072')
    a('v_mov_b32 v13, 0')
    a('s_waitcnt lgkmcnt(0)'); a('s_barrier')
    a('ds_read_b128 v[52:55], v13'); a('ds_read_b128 v[56:59], v13 offset:16')
    a('s_waitcnt lgkmcnt(0)')
    a('v_add_f32 v52, v52, v54'); a('v_add_f32 v56, v56, v58'); a('v_add_f32 v52, v52, v56')
    a('v_add_f32 v53, v53, v55'); a('v_add_f32 v57, v57, v59'); a('v_add_f32 v53, v53, v57')
    K1,K2=54,55
    a('s_waitcnt vmcnt(8)')
    a(f'v_mov_b32 v{K1}, 0'); a(f'v_mov_b32 v{K2}, 0')
    a('v_lshlrev_b32 v12, 3, v0'); a('v_sub_u32 v12, 0x7ff, v12')
    for i in range(8):
        m,rs,t=56,57,58
        rowstats(a,ST+i,ST+8+i,m,rs,t)
        a(f'v_fma_f32 v{t}, -v{m}, v53, v{ST+16+i}'); a(f'v_fma_f32 v{t}, v{rs}, v{t}, v52')
        a(f'v_cvt_pk_bf16_f32 v{t}, v{t}, v{t}'); a(f'v_and_b32 v{t}, 0xffff, v{t}')
        a(f'v_bfe_i32 v59, v{t}, 15, 1'); a('v_or_b32 v59, 0x8000, v59'); a(f'v_xor_b32 v{t}, v{t}, v59'); a(f'v_lshlrev_b32 v{t}, 16, v{t}')
        a(f'v_subrev_u32 v59, {i}, v12'); a(f'v_or_b32 v{t}, v{t}, v59')
        a(f'v_med3_u32 v{K2}, v{K1}, v{K2}, v{t}'); a(f'v_max_u32 v{K1}, v{K1}, v{t}')
    for c in ('quad_perm:[1,0,3,2]','quad_perm:[2,3,0,1]','row_half_mirror','row_mirror'):
        a(f'v_mov_b32_dpp v56, v{K1} {c} row_mask:0xf bank_mask:0xf'); a(f'v_mov_b32_dpp v57, v{K2} {c} row_mask:0xf bank_mask:0xf')
        top2step(a,K1,K2,56,57,58)
    for sw in ('v_permlane16_swap_b32','v_permlane32_swap_b32'):
        a(f'v_mov_b32 v56, v{K1}'); a(f'v_mov_b32 v57, v{K2}'); a(f'{sw} v{K1}, v56'); a(f'{sw} v{K2}, v57')
        top2step(a,K1,K2,56,57,58)
    a('v_lshrrev_b32 v12, 6, v0'); a('v_lshlrev_b32 v13, 3, v12')
    a(f'ds_write_b64 v13, v[{K1}:{K2}] offset:64')
    a('v_and_b32 v60, 63, v0'); a('v_lshlrev_b32 v60, 4, v60'); addc(a,30,4,WS_X1)
    for q,kr in enumerate((K1,K2)):
        a(f'v_and_b32 v61, 0x7ff, v{kr}'); a('v_sub_u32 v61, 0x7ff, v61'); a('v_lshl_add_u32 v61, v61, 10, v60')
        a(f'global_load_dwordx4 v[96:99], v61, s[30:31]')
    a('v_mov_b32 v13, 0')
    a('s_waitcnt lgkmcnt(0)'); a('s_barrier')
    a('ds_read_b128 v[56:59], v13 offset:64'); a('ds_read_b128 v[60:63], v13 offset:80')
    a('s_waitcnt lgkmcnt(0)')
    a(';TS3'); top2step(a,56,57,58,59,12); top2step(a,60,61,62,63,12); top2step(a,56,57,60,61,12)
    a('v_readfirstlane_b32 s22, v56'); a('v_readfirstlane_b32 s23, v57'); a('v_readfirstlane_b32 s24, v0')
    a('s_lshr_b32 s24, s24, 6')
    a('s_and_b32 s25, s22, 0x7ff'); a('s_sub_u32 s25, 0x7ff, s25'); a('s_and_b32 s26, s23, 0x7ff'); a('s_sub_u32 s26, 0x7ff, s26')
    a('s_cmp_ge_u32 s24, 2'); a('s_cbranch_scc1 K4_PUB')
    a('s_cmp_eq_u32 s24, 0'); a('s_cselect_b32 s27, s25, s26'); a('s_cselect_b32 s28, s22, s23')
    a('v_and_b32 v12, 63, v0'); a('v_lshlrev_b32 v13, 4, v12')
    a('s_lshl_b32 s29, s27, 10'); a(f's_add_u32 s29, s29, {WS_X1}'); a('s_add_u32 s30, s4, s29'); a('s_addc_u32 s31, s5, 0')
    a('global_load_dwordx4 v[16:19], v13, s[30:31]')
    a('s_lshl_b32 s29, s27, 2'); a('v_mov_b32 v14, s29')
    a('global_load_dword v20, v14, s[14:15]'); a('global_load_dword v21, v14, s[16:17]')
    a('v_lshlrev_b32 v14, 5, v12')
    a('ds_read_b128 v[32:35], v14 offset:1024'); a('ds_read_b128 v[36:39], v14 offset:1040')
    a('ds_read_b128 v[40:43], v14 offset:3072'); a('ds_read_b128 v[44:47], v14 offset:3088')
    a('s_waitcnt vmcnt(0) lgkmcnt(0)')
    rowstats(a,20,21,22,24,23)
    for d in range(4): unpack(a,48+2*d,49+2*d,16+d)
    h2calc(a,48,8,22,24,40,32,26)
    a('s_lshl_b32 s29, s24, 2'); a('v_lshlrev_b32 v15, 6, v12'); a('v_add_u32 v15, s29, v15')
    for d in range(8): a(f'ds_write_b32 v15, v{48+d} offset:{8192+8*d}')
    a('s_branch K4_H2DONE')
    a.label('K4_PUB')
    a('s_cmp_ge_u32 s2, 32'); a('s_cbranch_scc1 K4_H2DONE')
    a('s_cmp_eq_u32 s24, 2'); a('s_cselect_b32 s27, s25, s26'); a('s_cselect_b32 s28, s22, s23')
    a('s_lshr_b32 s28, s28, 16'); a('s_and_b32 s29, s28, 0x8000'); a('s_cmp_lg_u32 s29, 0'); a('s_mov_b32 s33, 0xffff'); a('s_cselect_b32 s29, 0x8000, s33'); a('s_xor_b32 s28, s28, s29'); a('s_lshl_b32 s28, s28, 16')
    a('v_mov_b32 v60, s28'); a(f'v_mul_f32 v60, {hx(-LOG2E)}, v60'); a('v_exp_f32 v60, v60'); a('v_add_f32 v60, 1.0, v60'); a('v_rcp_f32 v60, v60'); bf16r(a,60,60)
    a('v_or_b32 v61, 1, v60'); a('s_add_u32 s29, s27, 1'); a('v_mov_b32 v60, s29')
    a('s_and_b32 s29, s24, 1'); a('s_lshl_b32 s29, s29, 3'); a('s_lshl_b32 s33, s2, 7'); a('s_add_u32 s29, s29, s33'); a('v_mov_b32 v62, s29'); addc(a,34,4,WS_SEL)
    a('s_mov_b64 exec, 1')
    a('global_store_dwordx2 v62, v[60:61], s[34:35] sc1')
    a('s_mov_b64 exec, -1')
    a.label('K4_H2DONE')
    a('s_waitcnt lgkmcnt(0)'); a('s_barrier'); a(';TS4')
    a('v_lshrrev_b32 v12, 2, v0'); a('v_lshlrev_b32 v12, 3, v12')
    H=16
    for i in range(8): a(f'ds_read_b64 {vr(H+2*i,2)}, v12 offset:{8192+512*i}')
    ACC=32
    for i in range(16): a(f'v_mov_b32 v{ACC+i}, 0')
    a('s_waitcnt vmcnt(0) lgkmcnt(0)'); a(';TS5')
    for i in range(8):
        for d in range(4):
            t=48+2*d
            unpack(a,t,t+1,W+4*i+d)
            a(f'v_pk_fma_f32 {vr(ACC+4*d,2)}, {vr(t,2)}, {vr(H+2*i,2)}, {vr(ACC+4*d,2)} op_sel_hi:[0,1,1]')
            a(f'v_pk_fma_f32 {vr(ACC+4*d+2,2)}, {vr(t,2)}, {vr(H+2*i,2)}, {vr(ACC+4*d+2,2)} op_sel:[1,0,0] op_sel_hi:[1,1,1]')
    for c in ('row_ror:4','row_ror:8'):
        for i in range(16): dppadd(a,ACC+i,c)
    a('v_lshrrev_b32 v12, 4, v0'); a('v_lshlrev_b32 v12, 8, v12'); a('v_and_b32 v13, 3, v0'); a('v_lshlrev_b32 v13, 6, v13'); a('v_add_u32 v12, v12, v13')
    a('s_mov_b32 s16, 0x000f000f'); a('s_mov_b32 s17, 0x000f000f'); a('s_mov_b64 exec, s[16:17]')
    for i in range(4): a(f'ds_write_b128 v12, {vr(ACC+4*i,4)} offset:{16384+16*i}')
    a('s_mov_b64 exec, -1')
    a('s_waitcnt lgkmcnt(0)'); a('s_barrier')
    a('s_cmp_ge_u32 s24, 1'); a('s_cbranch_scc1 K4_END')
    a('v_lshlrev_b32 v12, 2, v0')
    for i in range(16): a(f'ds_read_b32 v{16+i}, v12 offset:{16384+256*i}')
    a('s_waitcnt lgkmcnt(0)')
    for st in (8,4,2,1):
        for i in range(st): a(f'v_add_f32 v{16+i}, v{16+i}, v{16+i+st}')
    bf16r(a,16,16)
    a('v_mov_b32 v17, v16'); a('v_permlane32_swap_b32 v16, v17')
    a(f's_mov_b32 s20, {hx(-LOG2E)}')
    silu(a,18,16,19,20); bf16r(a,18,18); a('v_mul_f32 v18, v18, v17'); bf16r(a,18,18)
    a('s_lshl_b32 s12, s2, 7'); a(f's_add_u32 s12, s12, {WS_ACT}'); a('s_add_u32 s4, s4, s12'); a('s_addc_u32 s5, s5, 0')
    a('s_mov_b32 exec_hi, 0')
    a('v_or_b32 v18, 1, v18')
    a('global_store_dword v12, v18, s[4:5] sc1')
    a('s_endpgm')
    a.label('K4_OUT')
    ldarg(a,6,'out')
    a(f's_sub_u32 s12, s2, {NMOE}')
    a('v_and_b32 v1, 63, v0'); a('v_lshrrev_b32 v2, 6, v0')
    a('s_lshl_b32 s13, s12, 4'); a('v_add_u32 v2, s13, v2')
    a('v_lshlrev_b32 v3, 10, v2'); a('v_lshlrev_b32 v4, 4, v1'); a('v_add_u32 v3, v3, v4'); a('v_add_u32 v7, 4096, v3')
    a('v_lshlrev_b32 v5, 2, v2'); a('v_lshlrev_b32 v6, 5, v1')
    a('s_waitcnt lgkmcnt(0)')
    addc(a,8,4,WS_X1); addc(a,14,4,WS_ST); addc(a,16,4,WS_ST+8192); addc(a,20,4,WS_MOD+2048); addc(a,22,4,WS_MOD+6144)
    X=16
    WD=104
    a(f's_mul_i32 s13, s12, {WDS}'); a(f's_add_u32 s13, s13, {WS_WD}'); a('s_add_u32 s24, s4, s13'); a('s_addc_u32 s25, s5, 0'); a(f's_mov_b32 s26, {WDS}'); a('s_mov_b32 s27, 0x00020000')
    a('v_lshlrev_b32 v10, 4, v0')
    a('v_add_u32 v8, 0x2000, v3'); a('v_add_u32 v9, 0x3000, v3')
    offs=[3,7,8,9]
    for i in range(4): a(f'global_load_dwordx4 {vr(X+4*i,4)}, v{offs[i]}, s[8:9]')
    for i in range(4):
        a(f'global_load_dword v{32+i}, v5, s[14:15] offset:{16*i}'); a(f'global_load_dword v{36+i}, v5, s[16:17] offset:{16*i}')
    SB=40; CB=48; GB=56
    a(f'global_load_dwordx4 {vr(SB,4)}, v6, s[20:21]'); a(f'global_load_dwordx4 {vr(SB+4,4)}, v6, s[20:21] offset:16')
    a(f'global_load_dwordx4 {vr(CB,4)}, v6, s[20:21] offset:2048'); a(f'global_load_dwordx4 {vr(CB+4,4)}, v6, s[20:21] offset:2064')
    a(f'global_load_dwordx4 {vr(GB,4)}, v6, s[22:23]'); a(f'global_load_dwordx4 {vr(GB+4,4)}, v6, s[22:23] offset:16')
    a('v_bfe_u32 v11, v0, 1, 2'); a('s_lshl_b32 s13, s12, 2'); a('v_add_u32 v11, s13, v11'); a('v_lshlrev_b32 v11, 2, v11')
    a('global_load_dword v116, v11, s[20:21]'); a('global_load_dword v117, v11, s[20:21] offset:2048'); a('global_load_dword v118, v11, s[22:23]')
    a(';TS1'); a('s_waitcnt vmcnt(3)'); a(';TS2')
    for i in range(4):
        F=64; XF=72; T=80
        rowstats(a,32+i,36+i,84,86,85)
        for d in range(4): unpack(a,F+2*d,F+2*d+1,X+4*i+d)
        for d in range(8): a(f'v_mov_b32 v{XF+d}, v{F+d}')
        h2calc(a,F,8,84,86,CB,SB,T)
        for d in range(0,8,2): a(f'v_pk_mul_f32 {vr(F+d,2)}, {vr(F+d,2)}, {vr(GB+d,2)}')
        for d in range(4): a(f'v_cvt_pk_bf16_f32 v{T+d}, v{F+2*d}, v{F+2*d+1}')
        for d in range(4): unpack(a,F+2*d,F+2*d+1,T+d)
        for d in range(0,8,2): a(f'v_pk_add_f32 {vr(F+d,2)}, {vr(F+d,2)}, {vr(XF+d,2)}')
        for d in range(4): a(f'v_cvt_pk_bf16_f32 v{88+4*i+d}, v{F+2*d}, v{F+2*d+1}')
    a(';TS3')
    for i in range(3): a(f'buffer_load_dwordx4 {vr(WD+4*i,4)}, v10, s[24:27], 0 offen' + (f' offset:0' if i==0 else '')); a('v_add_u32 v10, 4096, v10')
    addc(a,28,4,WS_SEL); a('s_and_b32 s30, s12, 31'); a('s_lshl_b32 s30, s30, 7'); a('v_mov_b32 v12, s30')
    a.label('K4_PS')
    a('global_load_dwordx4 v[120:123], v12, s[28:29] sc1')
    a('s_waitcnt vmcnt(0)')
    a('v_min_u32 v13, v120, v121'); a('v_min3_u32 v13, v13, v122, v123')
    a('v_readfirstlane_b32 s30, v13'); a('s_cmp_eq_u32 s30, 0'); a('s_cbranch_scc1 K4_PS')
    a('v_readfirstlane_b32 s30, v120'); a('v_readfirstlane_b32 s31, v122'); a('s_sub_u32 s30, s30, 1'); a('s_sub_u32 s31, s31, 1')
    a(';TS4')
    a('v_and_b32 v13, 1, v0'); a('v_cmp_eq_u32 vcc, 0, v13'); a('v_mov_b32 v14, s31'); a('v_mov_b32 v15, s30'); a('v_cndmask_b32 v14, v14, v15, vcc')
    a('v_cndmask_b32 v119, v123, v121, vcc'); a('v_and_b32 v119, 0xffff0000, v119')
    a('v_lshlrev_b32 v15, 10, v14'); a('v_lshrrev_b32 v11, 1, v11'); a('v_add_u32 v11, v15, v11')
    a('v_lshlrev_b32 v14, 2, v14')
    a('global_load_ushort v124, v11, s[8:9]'); a('global_load_dword v125, v14, s[14:15]'); a('global_load_dword v126, v14, s[16:17]')
    a('v_readfirstlane_b32 s33, v2')
    for i in range(4):
        a('s_cmp_eq_u32 s33, s30'); a(f's_cbranch_scc1 K4_SK{i}'); a('s_cmp_eq_u32 s33, s31'); a(f's_cbranch_scc1 K4_SK{i}')
        a(f'global_store_dwordx4 v{offs[i]}, {vr(88+4*i,4)}, s[6:7]')
        a.label(f'K4_SK{i}')
        if i<3: a('s_add_u32 s33, s33, 4')
    addc(a,34,4,WS_ACT)
    a('v_lshlrev_b32 v12, 4, v0'); a('v_add_u32 v13, 4096, v12'); a('v_add_u32 v14, 8192, v12'); a(f'v_min_u32 v14, {687*16}, v14')
    A=16
    a('v_readfirstlane_b32 s38, v0'); a('s_lshr_b32 s38, s38, 6'); a('s_lshl_b32 s39, s12, 2'); a('s_add_u32 s38, s38, s39')
    a('s_mul_i32 s39, s38, 763'); a('s_lshr_b32 s39, s39, 16'); a('s_mul_i32 s39, s39, 86'); a('s_sub_u32 s38, s38, s39')
    a('s_lshl_b32 s38, s38, 7'); a('v_mov_b32 v15, s38')
    a.label('K4_P1')
    a('global_load_dword v28, v15, s[34:35] sc1'); a('s_waitcnt vmcnt(0)')
    a('v_readfirstlane_b32 s38, v28'); a('s_cmp_eq_u32 s38, 0'); a('s_cbranch_scc1 K4_P1')
    a.label('K4_PA')
    for i in range(3): a(f'global_load_dwordx4 {vr(A+4*i,4)}, v{12+i}, s[34:35] sc1')
    a('s_waitcnt vmcnt(0)')
    a(f'v_and_b32 v15, v{A}, v{A+1}')
    for i in range(2,12,2): a(f'v_and_b32 v28, v{A+i}, v{A+i+1}'); a('v_and_b32 v15, v15, v28')
    a('v_and_b32 v15, 1, v15'); a('v_cmp_eq_u32 vcc, 0, v15'); a('s_cbranch_vccnz K4_PA')
    a(';TS5')
    ACC=32
    for i in range(3):
        for r in range(2):
            for d in range(2):
                t=40+4*r+2*d
                unpack(a,t,t+1,WD+4*i+2*r+d)
        for r in range(2):
            for d in range(2):
                t=40+4*r+2*d; h=vr(A+4*i+2*r,2)
                for e in range(2):
                    ac=vr(ACC+4*d+2*e,2); sel='op_sel_hi:[0,1]' if e==0 else 'op_sel:[1,0] op_sel_hi:[1,1]'
                    if i==0 and r==0: a(f'v_pk_mul_f32 {ac}, {vr(t,2)}, {h} {sel}')
                    else:
                        sel='op_sel_hi:[0,1,1]' if e==0 else 'op_sel:[1,0,0] op_sel_hi:[1,1,1]'
                        a(f'v_pk_fma_f32 {ac}, {vr(t,2)}, {h}, {ac} {sel}')
    for c in ('quad_perm:[1,0,3,2]','quad_perm:[2,3,0,1]','row_half_mirror','row_mirror'):
        for i in range(8): dppadd(a,ACC+i,c)
    a('v_lshrrev_b32 v12, 4, v0'); a('v_lshlrev_b32 v12, 5, v12')
    a('s_mov_b32 s36, 0x00010001'); a('s_mov_b32 s37, 0x00010001'); a('s_mov_b64 exec, s[36:37]')
    a(f'ds_write_b128 v12, {vr(ACC,4)}'); a(f'ds_write_b128 v12, {vr(ACC+4,4)} offset:16')
    a('s_mov_b64 exec, -1')
    rowstats(a,125,126,44,46,45)
    a('v_lshlrev_b32 v124, 16, v124'); a('v_sub_f32 v47, v124, v44'); a('v_mul_f32 v47, v47, v46'); bf16r(a,47,47)
    a('v_mul_f32 v47, v47, v117'); bf16r(a,47,47); a('v_add_f32 v47, v47, v116'); bf16r(a,47,47)
    a('s_waitcnt lgkmcnt(0)'); a('s_barrier')
    a('v_readfirstlane_b32 s14, v0'); a('s_cmp_ge_u32 s14, 64'); a('s_cbranch_scc1 K4_END')
    a('v_lshlrev_b32 v12, 2, v0')
    a('ds_read_b32 v16, v12'); a('ds_read_b32 v17, v12 offset:256')
    a('s_waitcnt lgkmcnt(0)')
    a('v_add_f32 v16, v16, v17'); dppadd(a,16,'row_ror:8')
    a('v_mov_b32 v17, v16'); a('v_permlane16_swap_b32 v16, v17'); a('v_add_f32 v16, v16, v17')
    halfsum(a,16,17)
    bf16r(a,16,16); a('v_mul_f32 v16, v16, v119'); bf16r(a,16,16)
    a('v_add_f32 v16, v16, v47'); bf16r(a,16,16); a('v_mul_f32 v16, v16, v118'); bf16r(a,16,16)
    a('v_add_f32 v16, v16, v124'); a('v_cvt_pk_bf16_f32 v16, v16, v16')
    a('s_mov_b64 exec, 0xff')
    a('global_store_short v11, v16, s[6:7]')
    a.label('K4_END'); a('s_endpgm')

def k5(a):
    a.label('k5_kernel')
    a('s_cmp_ge_u32 s2, 32'); a('s_cbranch_scc1 K5_END')
    ldarg(a,4,'ws'); ldarg(a,6,'wd'); ldarg(a,16,'out')
    a('v_lshrrev_b32 v1, 1, v0'); a('v_and_b32 v2, 1, v0')
    a('v_lshlrev_b32 v3, 10, v1'); a('v_lshlrev_b32 v4, 4, v2'); a('v_add_u32 v3, v3, v4'); a('s_lshl_b32 s12, s2, 5'); a('v_add_u32 v3, s12, v3')
    a('v_lshlrev_b32 v5, 3, v1')
    a('s_waitcnt lgkmcnt(0)')
    a(';TS1'); a('s_mov_b32 s8, s6'); a('s_mov_b32 s9, s7'); a(f's_mov_b32 s10, {1376*1024}'); a('s_mov_b32 s11, 0x00020000')
    a(f's_add_u32 s20, s4, {WS_ACT}'); a('s_addc_u32 s21, s5, 0'); a(f's_mov_b32 s22, {1376*8}'); a('s_mov_b32 s23, 0x00020000')
    W=16; H=48
    for i in range(6):
        a(f'buffer_load_dwordx4 {vr(W+4*i,4)}, v3, s[8:11], 0 offen')
        if i<5: a('v_add_u32 v3, 0x40000, v3')
    for i in range(6): a(f'buffer_load_dwordx2 {vr(H+2*i,2)}, v5, s[20:23], 0 offen offset:{0}'); a('v_add_u32 v5, 2048, v5')
    addc(a,24,4,WS_SEL)
    a('v_and_b32 v6, 31, v0'); a('v_lshrrev_b32 v7, 4, v6'); a('v_and_b32 v8, 15, v0'); a('s_lshl_b32 s13, s2, 4'); a('v_add_u32 v8, s13, v8')
    a('v_lshlrev_b32 v9, 3, v7')
    a('global_load_dwordx2 v[10:11], v9, s[24:25]')
    a('v_lshlrev_b32 v9, 11, v7'); a('v_lshlrev_b32 v12, 2, v8'); a('v_add_u32 v9, v9, v12')
    a('global_load_dword v13, v9, s[24:25] offset:64')
    addc(a,26,4,WS_MOD+6144)
    a('global_load_dword v14, v12, s[26:27]')
    ACC=64
    for i in range(16): a(f'v_mov_b32 v{ACC+i}, 0')
    a('s_waitcnt vmcnt(2)'); a(';TS2')
    a('v_lshlrev_b32 v9, 10, v10'); a('v_lshlrev_b32 v12, 1, v8'); a('v_add_u32 v9, v9, v12')
    addc(a,28,4,WS_X1)
    a('global_load_ushort v15, v9, s[28:29]')
    for i in range(6):
        for d in range(4):
            t=80+2*d
            unpack(a,t,t+1,W+4*i+d)
            a(f'v_pk_fma_f32 {vr(ACC+4*d,2)}, {vr(t,2)}, {vr(H+2*i,2)}, {vr(ACC+4*d,2)} op_sel_hi:[0,1,1]')
            a(f'v_pk_fma_f32 {vr(ACC+4*d+2,2)}, {vr(t,2)}, {vr(H+2*i,2)}, {vr(ACC+4*d+2,2)} op_sel:[1,0,0] op_sel_hi:[1,1,1]')
    for c in ('quad_perm:[2,3,0,1]','row_ror:4','row_ror:8'):
        for i in range(16): dppadd(a,ACC+i,c)
    a('v_lshrrev_b32 v12, 4, v0'); a('v_lshlrev_b32 v12, 7, v12'); a('v_lshlrev_b32 v2, 6, v2'); a('v_add_u32 v12, v12, v2')
    a('s_mov_b32 s14, 0x00030003'); a('s_mov_b32 s15, 0x00030003'); a('s_mov_b64 exec, s[14:15]')
    for i in range(4): a(f'ds_write_b128 v12, {vr(ACC+4*i,4)} offset:{16*i}')
    a('s_mov_b64 exec, -1')
    a('s_waitcnt lgkmcnt(0)'); a('s_barrier')
    a(';TS3'); a('v_readfirstlane_b32 s14, v0'); a('s_cmp_ge_u32 s14, 64'); a('s_cbranch_scc1 K5_END')
    a('v_and_b32 v12, 15, v0'); a('v_lshrrev_b32 v2, 3, v12'); a('v_lshlrev_b32 v2, 6, v2'); a('v_and_b32 v12, 7, v12'); a('v_lshlrev_b32 v12, 3, v12'); a('v_add_u32 v12, v12, v2')
    a('v_lshlrev_b32 v2, 2, v7'); a('v_add_u32 v12, v12, v2'); a('v_lshrrev_b32 v2, 5, v0'); a('v_lshlrev_b32 v2, 11, v2'); a('v_add_u32 v12, v12, v2')
    for i in range(16): a(f'ds_read_b32 v{16+i}, v12 offset:{128*i}')
    a('s_waitcnt lgkmcnt(0)')
    for st in (8,4,2,1):
        for i in range(st): a(f'v_add_f32 v{16+i}, v{16+i}, v{16+i+st}')
    halfsum(a,16,17)
    a('s_waitcnt vmcnt(0)')
    bf16r(a,16,16); a('v_mul_f32 v16, v16, v11'); bf16r(a,16,16)
    a('v_add_f32 v16, v16, v13'); bf16r(a,16,16); a('v_mul_f32 v16, v16, v14'); bf16r(a,16,16)
    a('v_lshlrev_b32 v15, 16, v15'); a('v_add_f32 v16, v16, v15'); a('v_cvt_pk_bf16_f32 v16, v16, v16')
    a('s_mov_b32 exec_hi, 0')
    a('global_store_short v9, v16, s[16:17]')
    a.label('K5_END'); a('s_endpgm')
```

```python
from common import *
NK0=550
PFBYTES=[24576]
def wavesum(a,regs,t):
    for c in ('quad_perm:[1,0,3,2]','quad_perm:[2,3,0,1]','row_half_mirror','row_mirror'):
        for r in regs: dppadd(a,r,c)
    for sw in ('v_permlane16_swap_b32','v_permlane32_swap_b32'):
        for r,q in zip(regs,t): a(f'v_mov_b32 v{q}, v{r}')
        for r,q in zip(regs,t): a(f'{sw} v{r}, v{q}')
        for r,q in zip(regs,t): a(f'v_add_f32 v{r}, v{r}, v{q}')
def k0(a):
    a.label('k0_kernel')
    a(f's_cmp_ge_u32 s2, {NK0}'); a('s_cbranch_scc1 K0_END')
    import os
    K0S=int(os.environ.get('K0S','32'))
    if K0S:
        a(f's_cmp_ge_u32 s2, {K0S}'); a('s_cbranch_scc1 K0_NOSELF')
        a('s_getpc_b64 s[60:61]'); a.label('K0_PC0')
        a('s_sub_u32 s60, s60, K0_PC0-k0_kernel'); a('s_subb_u32 s61, s61, 0')
        a('v_lshlrev_b32 v150, 4, v0'); a('v_mov_b32 v151, s61'); a('v_add_co_u32 v150, vcc, s60, v150'); a('s_nop 1'); a('v_addc_co_u32 v151, vcc, 0, v151, vcc')
        a('global_load_dwordx4 v[152:155], v[150:151], off')
        a('v_add_co_u32 v150, vcc, 4096, v150'); a('s_nop 1'); a('v_addc_co_u32 v151, vcc, 0, v151, vcc')
        a('global_load_dwordx4 v[152:155], v[150:151], off')
        a.label('K0_NOSELF')
    ldarg(a,4,'ws')
    a('s_cmp_ge_u32 s2, 534'); a('s_cbranch_scc1 K0_P')
    a('s_cmp_ge_u32 s2, 448'); a('s_cbranch_scc1 K0_D')
    a('s_cmp_ge_u32 s2, 416'); a('s_cbranch_scc1 K0_R4')
    a('s_cmp_ge_u32 s2, 320'); a('s_cbranch_scc1 K0_F')
    a('s_cmp_ge_u32 s2, 192'); a('s_cbranch_scc1 K0_L')
    ldarg(a,6,'wmod'); ldarg(a,8,'c')
    a(f's_mov_b32 s20, {hx(-LOG2E)}')
    a('s_and_b32 s12, s2, 3'); a('s_lshr_b32 s13, s2, 2')
    a('v_lshrrev_b32 v1, 3, v0'); a('s_lshl_b32 s14, s12, 7'); a('v_add_u32 v1, s14, v1')
    a('v_lshlrev_b32 v2, 1, v1'); a('v_mul_u32_u24 v3, 6144, v1')
    a('v_and_b32 v4, 7, v0'); a('v_lshlrev_b32 v4, 4, v4'); a('v_add_u32 v3, v3, v4')
    a('s_lshl_b32 s14, s13, 7'); a('v_add_u32 v3, s14, v3')
    a('s_lshl_b32 s15, s2, 10'); a('v_lshlrev_b32 v5, 2, v0'); a('v_add_u32 v5, s15, v5'); a('v_mov_b32 v6, 0')
    a('s_waitcnt lgkmcnt(0)'); a(';TS1')
    C=8; S=24; W=56; ACC=120; T=128
    for i in range(4): a(f'global_load_ushort v{C+i}, v2, s[8:9] offset:{i*64}')
    for i in range(4):
        a(f'global_load_dwordx4 {vr(W+4*i,4)}, v3, s[6:7]')
        if i<3: a('v_add_u32 v3, 196608, v3')
    for i in range(8): a(f'v_mov_b32 v{ACC+i}, 0')
    a('s_waitcnt vmcnt(4)')
    for i in range(4):
        a(f'v_lshlrev_b32 v{C+i}, 16, v{C+i}'); silu(a,S+2*i,C+i,T+i,20)
    for i in range(4): bf16r(a,S+2*i,S+2*i)
    for i in range(4):
        a(f's_waitcnt vmcnt({3-i})')
        for d in range(4):
            t=T+2*d
            unpack(a,t,t+1,W+4*i+d)
            a(f'v_pk_fma_f32 {vr(ACC+2*d,2)}, {vr(t,2)}, {vr(S+2*i,2)}, {vr(ACC+2*d,2)} op_sel_hi:[1,0,1]')
    a(';TS2')
    a('s_cmp_ge_u32 s2, 72'); a('s_cbranch_scc1 K0_MNZ')
    addc(a,16,4,WS_ST); a('global_store_dword v5, v6, s[16:17]')
    a.label('K0_MNZ')
    for i in range(8): dppadd(a,ACC+i,'row_ror:8')
    a('v_lshrrev_b32 v6, 4, v0'); a('v_lshlrev_b32 v6, 8, v6'); a('v_lshlrev_b32 v3, 1, v4'); a('v_add_u32 v6, v6, v3')
    a('s_mov_b32 s16, 0x00ff00ff'); a('s_mov_b32 s17, 0x00ff00ff'); a('s_mov_b64 exec, s[16:17]')
    a(f'ds_write_b128 v6, {vr(ACC,4)}'); a(f'ds_write_b128 v6, {vr(ACC+4,4)} offset:16')
    a('s_mov_b64 exec, -1')
    a('v_lshlrev_b32 v6, 2, v0')
    a('s_waitcnt lgkmcnt(0)'); a('s_barrier')
    a('v_readfirstlane_b32 s14, v0'); a('s_cmp_ge_u32 s14, 64'); a('s_cbranch_scc1 K0_END')
    for i in range(16): a(f'ds_read_b32 v{T+i}, v6 offset:{i*256}')
    a('s_mul_i32 s14, s12, 12288'); a('s_lshl_b32 s15, s13, 8'); a('s_add_u32 s14, s14, s15'); a(f's_add_u32 s14, s14, {WS_MODP}')
    a('s_add_u32 s4, s4, s14'); a('s_addc_u32 s5, s5, 0')
    a('s_waitcnt lgkmcnt(0)')
    for st in (8,4,2,1):
        for i in range(st): a(f'v_add_f32 v{T+i}, v{T+i}, v{T+i+st}')
    a(f'global_store_dword v6, v{T}, s[4:5]')
    a('s_endpgm')
    a.label('K0_L')
    ldarg(a,10,'x')
    a('s_sub_u32 s12, s2, 192')
    a('v_and_b32 v1, 63, v0'); a('v_lshrrev_b32 v2, 6, v0')
    a('v_lshlrev_b32 v5, 4, v1'); a('v_lshlrev_b32 v6, 12, v2'); a('v_add_u32 v5, v5, v6')
    a('s_lshl_b32 s13, s12, 14'); a('v_add_u32 v5, s13, v5')
    a('s_waitcnt lgkmcnt(0)'); a(';TS1')
    X=8; F=32; A=64; T=72
    for i in range(4): a(f'global_load_dwordx4 {vr(X+4*i,4)}, v5, s[10:11] offset:{i*1024}')
    a('v_and_b32 v6, 15, v1'); a('v_lshlrev_b32 v7, 2, v2')
    for i in range(4):
        a(f'v_add_u32 v{24+i}, {i}, v7'); a(f'v_xor_b32 v{24+i}, v{24+i}, v6'); a(f'v_lshlrev_b32 v{24+i}, 4, v{24+i}')
        a(f'v_lshl_add_u32 v{24+i}, v1, 8, v{24+i}')
    a('v_lshrrev_b32 v6, 4, v0'); a('v_and_b32 v7, 15, v0'); a('v_xor_b32 v7, v7, v6'); a('v_lshlrev_b32 v7, 4, v7')
    a('v_and_b32 v3, 1, v6'); a('v_lshl_add_u32 v7, v3, 9, v7'); a('v_lshrrev_b32 v6, 1, v6'); a('v_lshl_add_u32 v7, v6, 10, v7')
    a('s_lshr_b32 s13, s12, 1'); a('s_lshl_b32 s13, s13, 15'); a('s_and_b32 s14, s12, 1'); a('s_lshl_b32 s14, s14, 8'); a('s_add_u32 s13, s13, s14')
    a('s_add_u32 s4, s4, s13'); a('s_addc_u32 s5, s5, 0')
    a('v_lshlrev_b32 v6, 4, v0')
    for i in range(4):
        a(f's_waitcnt vmcnt({3-i})')
        for d in range(4): unpack(a,F+8*i+2*d,F+8*i+2*d+1,X+4*i+d)
    def rowsum(src):
        for i in range(4):
            b=src+8*i
            a(f'v_pk_add_f32 {vr(A+2*i,2)}, {vr(b,2)}, {vr(b+2,2)}')
        for i in range(4): a(f'v_pk_add_f32 {vr(A+2*i,2)}, {vr(A+2*i,2)}, {vr(F+8*i+4 if src==F else src+8*i+4,2)}')
        for i in range(4): a(f'v_pk_add_f32 {vr(A+2*i,2)}, {vr(A+2*i,2)}, {vr(src+8*i+6,2)}')
        for i in range(4): a(f'v_add_f32 v{A+2*i}, v{A+2*i}, v{A+2*i+1}')
    rowsum(F); wavesum(a,[A+2*i for i in range(4)],[T+i for i in range(4)])
    for i in range(4): a(f'v_mul_f32 v{A+2*i}, {hx(-1.0/512)}, v{A+2*i}')
    for i in range(4):
        for d in range(4): a(f'v_pk_add_f32 {vr(F+8*i+2*d,2)}, {vr(F+8*i+2*d,2)}, {vr(A+2*i,2)} op_sel_hi:[1,0]')
    for i in range(4):
        a(f'v_pk_mul_f32 {vr(A+2*i,2)}, {vr(F+8*i,2)}, {vr(F+8*i,2)}')
    for d in range(1,4):
        for i in range(4): a(f'v_pk_fma_f32 {vr(A+2*i,2)}, {vr(F+8*i+2*d,2)}, {vr(F+8*i+2*d,2)}, {vr(A+2*i,2)}')
    for i in range(4): a(f'v_add_f32 v{A+2*i}, v{A+2*i}, v{A+2*i+1}')
    wavesum(a,[A+2*i for i in range(4)],[T+i for i in range(4)])
    for i in range(4): a(f'v_mov_b32 v{T+i}, {hx(1e-5)}')
    for i in range(4): a(f'v_fmac_f32 v{T+i}, {hx(1.0/512)}, v{A+2*i}')
    for i in range(4): a(f'v_rsq_f32 v{A+2*i}, v{T+i}')
    for i in range(4):
        for d in range(4): a(f'v_pk_mul_f32 {vr(F+8*i+2*d,2)}, {vr(F+8*i+2*d,2)}, {vr(A+2*i,2)} op_sel_hi:[1,0]')
        for d in range(4): a(f'v_cvt_pk_bf16_f32 v{X+4*i+d}, v{F+8*i+2*d}, v{F+8*i+2*d+1}')
        a(f'ds_write_b128 v{24+i}, {vr(X+4*i,4)}')
    a('s_waitcnt lgkmcnt(0)'); a('s_barrier')
    for j in range(4): a(f'ds_read_b128 {vr(X+4*j,4)}, v6 offset:{j*4096}')
    for j in range(4):
        a(f's_waitcnt lgkmcnt({3-j})')
        a(f'global_store_dwordx4 v7, {vr(X+4*j,4)}, s[4:5]')
        if j<3: a('v_add_u32 v7, 8192, v7')
    a('s_endpgm')
    a.label('K0_F')
    ldarg(a,10,'wqkv')
    a('s_sub_u32 s12, s2, 320'); a('s_and_b32 s13, s12, 31'); a('s_lshr_b32 s12, s12, 5')
    a('v_and_b32 v1, 127, v0'); a('v_lshrrev_b32 v2, 7, v0')
    a('v_mul_u32_u24 v3, 24576, v2'); a('v_lshl_add_u32 v3, v1, 3, v3')
    a('s_mul_i32 s14, s13, 49152'); a('s_lshl_b32 s15, s12, 10'); a('s_add_u32 s14, s14, s15'); a('v_add_u32 v3, s14, v3')
    for i in range(1,4): a(f'v_add_u32 v{3+i}, {6144*i}, v3')
    a('s_waitcnt lgkmcnt(0)'); a(';TS1')
    R=8; O=32
    for e in range(8): a(f'global_load_dwordx2 {vr(R+2*e,2)}, v{3+(e>>1)}, s[10:11] offset:{(e&1)*3072}')
    a('v_lshrrev_b32 v7, 3, v1'); a('v_lshlrev_b32 v7, 15, v7'); a('v_and_b32 v1, 7, v1'); a('v_lshl_add_u32 v7, v1, 6, v7'); a('v_lshl_add_u32 v7, v2, 9, v7')
    a('s_lshl_b32 s14, s12, 19'); a('s_lshl_b32 s15, s13, 10'); a('s_add_u32 s14, s14, s15'); a(f's_add_u32 s14, s14, {WS_W}')
    a('s_add_u32 s4, s4, s14'); a('s_addc_u32 s5, s5, 0')
    a('s_mov_b32 s14, 0x05040100'); a('s_mov_b32 s15, 0x07060302')
    a('s_waitcnt vmcnt(0)')
    for c in range(4):
        for dd in range(4): a(f'v_perm_b32 v{O+4*c+dd}, v{R+2*(2*dd+1)+(c>>1)}, v{R+2*(2*dd)+(c>>1)}, s{14+(c&1)}')
        a(f'global_store_dwordx4 v7, {vr(O+4*c,4)}, s[4:5] offset:{16*c}')
    a('s_endpgm')
    a.label('K0_D')
    ldarg(a,10,'wd')
    a('s_sub_u32 s12, s2, 448')
    a('v_lshrrev_b32 v1, 5, v0'); a('v_and_b32 v2, 31, v0')
    a('v_lshlrev_b32 v3, 11, v1'); a('v_lshl_add_u32 v3, v2, 4, v3'); a('s_lshl_b32 s13, s12, 14'); a('v_add_u32 v3, s13, v3')
    a('s_waitcnt lgkmcnt(0)'); a(';TS1')
    for h in range(2):
        a(f'global_load_dwordx4 {vr(8+8*h,4)}, v3, s[10:11] offset:{h*512}'); a(f'global_load_dwordx4 {vr(12+8*h,4)}, v3, s[10:11] offset:{1024+h*512}')
    a('v_and_b32 v4, 7, v2'); a('v_xor_b32 v4, v4, v1'); a('v_lshlrev_b32 v4, 4, v4'); a('v_lshl_add_u32 v4, v2, 8, v4')
    a('v_lshlrev_b32 v5, 4, v0')
    a('v_bfe_u32 v6, v0, 4, 3'); a('v_and_b32 v7, 7, v0'); a('v_xor_b32 v6, v6, v7'); a('v_lshlrev_b32 v6, 4, v6')
    a('v_lshrrev_b32 v7, 3, v0'); a(f'v_mul_u32_u24 v7, {WDS}, v7'); a('v_add_u32 v6, v6, v7')
    a('s_lshl_b32 s13, s12, 7'); a(f's_add_u32 s13, s13, {WS_WD}'); a('s_add_u32 s4, s4, s13'); a('s_addc_u32 s5, s5, 0')
    a('v_add_u32 v24, 8192, v4')
    for h in range(2):
        a(f's_waitcnt vmcnt({2-2*h})')
        ad=4 if h==0 else 24
        a(f'ds_write2_b64 v{ad}, {vr(8+8*h,2)}, {vr(12+8*h,2)} offset0:0 offset1:1')
        a(f'ds_write2_b64 v{ad}, {vr(10+8*h,2)}, {vr(14+8*h,2)} offset0:16 offset1:17')
    a('s_waitcnt lgkmcnt(0)'); a('s_barrier')
    for i in range(4): a(f'ds_read_b128 {vr(8+4*i,4)}, v5 offset:{i*4096}')
    for i in range(4):
        a(f's_waitcnt lgkmcnt({3-i})')
        a(f'global_store_dwordx4 v6, {vr(8+4*i,4)}, s[4:5]')
        if i<3: a(f'v_add_u32 v6, {32*WDS}, v6')
    a('s_endpgm')
    a.label('K0_R4')
    ldarg(a,10,'wo')
    a('s_sub_u32 s12, s2, 416')
    a('v_lshlrev_b32 v1, 2, v0'); a('s_lshl_b32 s13, s12, 14'); a('v_add_u32 v1, s13, v1')
    a('s_waitcnt lgkmcnt(0)')
    R=8; O=32
    for d in range(16):
        a(f'global_load_dword v{R+d}, v1, s[10:11] offset:{(d&3)*1024}')
        if (d&3)==3 and d<15: a('v_add_u32 v1, 4096, v1')
    a('v_and_b32 v2, 15, v0'); a('v_lshlrev_b32 v2, 1, v2')
    a('v_and_b32 v3, 3, v2'); a('v_bfe_u32 v4, v2, 2, 2'); a('v_lshlrev_b32 v4, 3, v4'); a('v_add_u32 v3, v3, v4')
    a('v_lshrrev_b32 v4, 4, v2'); a('v_lshlrev_b32 v4, 2, v4'); a('v_add_u32 v3, v3, v4'); a('v_lshlrev_b32 v3, 4, v3')
    a('v_lshrrev_b32 v4, 4, v0'); a('v_lshlrev_b32 v4, 15, v4'); a('v_add_u32 v3, v3, v4')
    a('s_lshl_b32 s13, s12, 10'); a(f's_add_u32 s13, s13, {WS_WO}'); a('s_add_u32 s4, s4, s13'); a('s_addc_u32 s5, s5, 0')
    a('s_mov_b32 s14, 0x05040100'); a('s_mov_b32 s15, 0x07060302')
    a('s_waitcnt vmcnt(0)')
    for hf in range(2):
        for dd in range(4):
            e=2*dd; d=(e&3)+8*(e>>2)+4*hf
            a(f'v_perm_b32 v{O+8*hf+dd}, v{R+d+1}, v{R+d}, s14'); a(f'v_perm_b32 v{O+8*hf+4+dd}, v{R+d+1}, v{R+d}, s15')
        a(f'global_store_dwordx4 v3, {vr(O+8*hf,4)}, s[4:5] offset:{hf*512}'); a(f'global_store_dwordx4 v3, {vr(O+8*hf+4,4)}, s[4:5] offset:{hf*512+16}')
    a('s_endpgm')
    a.label('K0_P')
    codepf(a,'K0_PC','k1_kernel',PFBYTES[0]); codepf(a,'K0_PC2','K4_END-4096',4096)
    a('s_waitcnt vmcnt(0)')
    a.label('K0_END')
    a('s_endpgm')
```
